```python
import torch

def _softmax(x, axis=-1):
    return torch.softmax(x, dim=axis)
def _gelu(x):
    return torch.nn.functional.gelu(x, approximate="tanh")
def _silu(x):
    return torch.nn.functional.silu(x)
def _sigmoid(x):
    return torch.sigmoid(x)
def _layernorm(x, axis=-1, eps=1e-5):
    m = x.mean(dim=axis, keepdim=True)
    v = x.var(dim=axis, keepdim=True, unbiased=False)
    return (x - m) / torch.sqrt(v + eps)
def _scatter_add(tgt, idx, src, axis=0):
    return tgt.clone().index_add_(axis, idx, src)
def _segment_sum(src, seg, n):
    out = torch.zeros((n,) + src.shape[1:], dtype=src.dtype)
    return out.index_add_(0, seg, src)
def _pad(x, pw):
    flat = tuple(v for pair in reversed(pw) for v in pair)
    return torch.nn.functional.pad(x, flat)

kernel_name = 'standalone__mha_softmax__near_ridge'

def setup_inputs():

    _w = (lambda a: (lambda t: t.to(torch.bfloat16) if t.is_floating_point() else t)(torch.as_tensor(a)))
    B, H, Sq, Sk, D = 16, 32, 304, 1024, 128
    return {
        "q": _w((lambda *s: torch.randn(*s, dtype=torch.bfloat16) * 0.8)(B, H, Sq, D)),
        "k": _w((lambda *s: torch.randn(*s, dtype=torch.bfloat16) * 0.8)(B, H, Sk, D)),
        "v": _w((lambda *s: torch.randn(*s, dtype=torch.bfloat16) * 0.05)(B, H, Sk, D)),
    }

def reference(q, k, v):
    scale = q.shape[-1] ** -0.5
    scores = torch.einsum("bhqd,bhkd->bhqk", q, k) * scale
    p = _softmax(scores, axis=-1)
    return torch.einsum("bhqk,bhkd->bhqd", p, v)
```

```python
import argparse
import re
import struct
import sys

NAME = "standalone__mha_softmax__near_ridge"

HEADER = """; Kernarg layout for this problem (48 bytes, ptrs only, base s[0:1]):
; @launch grid=(256,1,1) block=(256,1,1) lds=163840
"""

QBYTES = 304 * 256
SLOT = 32768
NSLOT = 5
RING = SLOT * NSLOT


def f2u(x):
    return struct.unpack("<I", struct.pack("<f", x))[0]


CSCALE = f2u((128.0 ** -0.5) * 1.4426950408889634)
LIMIT = f2u(2.0 ** 40)
NEGINF = 0xFF800000

sQ, sK, sV, sOUT = 4, 6, 8, 10
sA, sB, sO, sKS = 12, 16, 20, 24
sVB = 28
sOffA, sOffB, sStep, sKV = 30, 31, 32, 33
sRd, sWr, sW4096, sJ = 34, 35, 36, 37
sD1, sDpos, sDneg, sD2 = 38, 39, 40, 41
sHead, sNext, sRelax, sBad, sRedo = 42, 43, 44, 45, 46
sW, sG, sPrev = 47, 48, 49
sC = 50
sQn = 52
sT0, sT1, sT2, sT3 = 54, 55, 56, 57
sScr = 58
sValid = 60
sLim = 62
sHl = 63
sPl = 64
sDbg = 68
sTS = 72
NSGPR = 96

vTid = 0
vDma = 1
vKA = 2
vVA = 10
vL = 14
vM = 17
vOlo, vOhi = 20, 21
vLane16 = 22
vKg = 23
vX = 24
vQ = 32
vNM = 128
vS = 176
vT = 224
aO = 0
aK = 192
aV = 224

UT = [0, 1, 2, 0, 1]
UB = [0, 1, 0, 1, 2]


class Asm:
    def __init__(self):
        self.lines = []

    def __call__(self, s):
        for ln in s.strip("\n").split("\n"):
            ln = ln.strip()
            if ln:
                self.lines.append(ln)

    def label(self, n):
        self.lines.append(n + ":")

    def text(self):
        out = []
        for ln in self.lines:
            out.append(ln if ln.endswith(":") or ln.startswith(".") else "    " + ln)
        return "\n".join(out) + "\n"


def vr(b, n=1):
    return f"v{b}" if n == 1 else f"v[{b}:{b + n - 1}]"


def ar(b, n=1):
    return f"a{b}" if n == 1 else f"a[{b}:{b + n - 1}]"


def sr(b, n=1):
    return f"s{b}" if n == 1 else f"s[{b}:{b + n - 1}]"


MFMA = "v_mfma_f32_32x32x16_bf16"


def qk_mfma(tile, buf, s, cinit):
    d = vr(vS + 16 * buf, 16)
    c = d if s else cinit
    return f"{MFMA} {d}, {ar(aK + 4 * s, 4)}, {vr(vQ + 32 * tile + 4 * s, 4)}, {c}"


def pv_mfma(tile, buf, f):
    t, dt = f >> 2, f & 3
    d = ar(aO + 64 * tile + 16 * dt, 16)
    return f"{MFMA} {d}, {ar(aV + 4 * f, 4)}, {vr(vS + 16 * buf + 8 * t, 4)}, {d}"


def k_read(s, off=0, dst=None):
    dst = dst or ar(aK + 4 * s, 4)
    return f"ds_read_b128 {dst}, {vr(vKA + s)}" + (f" offset:{off}" if off else "")


def v_read(k):
    f, jj = k >> 1, k & 1
    t, dt = f >> 2, f & 3
    off = 16384 + ((t << 2) | (jj << 5)) * 256
    return f"ds_read_b64_tr_b16 {ar(aV + 4 * f + 2 * jj, 2)}, {vr(vVA + (dt ^ jj))} offset:{off}"


class Gen:
    def __init__(self, opt):
        self.o = opt
        self.a = Asm()

    def dma(self, half, i):
        srd = sA if half == 0 else sB
        off = sOffA if half == 0 else sOffB
        nt = " nt" if self.o.nt else ""
        o = f" offset:{1024 * i}" if i else ""
        return f"buffer_load_dwordx4 {vr(vDma)}, {sr(srd, 4)}, {sr(off)} offen{o}{nt} lds"

    def m0set(self, half):
        return f"s_mov_b32 m0, {sr(sWr)}" if half == 0 else f"s_add_u32 m0, {sr(sWr)}, 16384"

    def item_advance(self):
        return [
            f"s_add_u32 {sr(sOffA)}, {sr(sOffA)}, {sr(sStep)}",
            f"s_add_u32 {sr(sOffB)}, {sr(sOffB)}, {sr(sStep)}",
            f"s_add_u32 {sr(sWr)}, {sr(sWr)}, {SLOT}",
            f"s_cmp_ge_u32 {sr(sWr)}, {RING}",
            f"s_cselect_b32 {sr(sWr)}, {sr(sW4096)}, {sr(sWr)}",
        ]

    def issue_item(self):
        a = self.a
        for half in (0, 1):
            a(self.m0set(half))
            a("s_nop 0")
            for i in range(4):
                a(self.dma(half, i))
        for ln in self.item_advance():
            a(ln)

    def src_q01(self):
        a = self.a
        a(f"""
        s_mov_b32 {sr(sKV)}, {sr(sOffA)}
        s_mov_b32 {sr(sA)}, {sr(sQn)}
        s_mov_b32 {sr(sA + 1)}, {sr(sQn + 1)}
        s_mov_b32 {sr(sB)}, {sr(sQn)}
        s_mov_b32 {sr(sB + 1)}, {sr(sQn + 1)}
        s_cmp_lg_u32 {sr(sNext)}, 0
        s_cselect_b32 {sr(sA + 2)}, {QBYTES}, 0
        s_mov_b32 {sr(sB + 2)}, {sr(sA + 2)}
        s_mov_b32 {sr(sOffA)}, 0
        s_mov_b32 {sr(sOffB)}, 16384
        s_mov_b32 {sr(sStep)}, 32768
        """)

    def src_q2(self):
        a = self.a
        a(f"""
        s_add_u32 {sr(sA)}, {sr(sQn)}, 65536
        s_addc_u32 {sr(sA + 1)}, {sr(sQn + 1)}, 0
        s_cmp_lg_u32 {sr(sNext)}, 0
        s_cselect_b32 {sr(sA + 2)}, {QBYTES - 65536}, 0
        s_mov_b32 {sr(sB + 2)}, 0
        s_mov_b32 {sr(sOffA)}, 0
        s_mov_b32 {sr(sOffB)}, 0
        """)

    def src_kv(self):
        a = self.a
        a(f"""
        s_mov_b32 {sr(sA)}, {sr(sKS)}
        s_mov_b32 {sr(sA + 1)}, {sr(sKS + 1)}
        s_mov_b32 {sr(sB)}, {sr(sVB)}
        s_mov_b32 {sr(sB + 1)}, {sr(sVB + 1)}
        s_cmp_lg_u32 {sr(sNext)}, 0
        s_cselect_b32 {sr(sA + 2)}, {2 * 262144}, 0
        s_mov_b32 {sr(sB + 2)}, {sr(sA + 2)}
        s_mov_b32 {sr(sOffA)}, {sr(sKV)}
        s_mov_b32 {sr(sOffB)}, {sr(sKV)}
        s_mov_b32 {sr(sStep)}, 16384
        """)

    def ring_next(self, dst, src):
        a = self.a
        a(f"s_add_u32 {sr(dst)}, {sr(src)}, {SLOT}")
        a(f"s_cmp_ge_u32 {sr(dst)}, {RING}")
        a(f"s_cselect_b32 {sr(dst)}, 0, {sr(dst)}")

    def set_kaddr(self, soff):
        a = self.a
        for s in range(8):
            a(f"v_xor_b32 {vr(vKA + s)}, {s << 5}, {vr(vKg)}")
        for s in range(8):
            a(f"v_add_u32 {vr(vKA + s)}, {sr(soff)}, {vr(vKA + s)}")

    def stamp(self, idx):
        if self.o.stamps:
            self.a(f"s_memtime {sr(sTS + 2 * idx, 2)}")

    def softmax_fill(self, gaps, G0):
        for n in range(5):
            b = vS + 16 * UB[n]
            l = vL + UT[n]
            for e in range(17):
                g = (16 * n + G0 + e) % 80
                items = []
                if e < 16:
                    items.append(("exp", f"v_exp_f32 {vr(b + e)}, {vr(b + e)}", n, e))
                if e >= 1:
                    items.append(("add", f"v_add_f32 {vr(l)}, {vr(l)}, {vr(b + e - 1)}", n, e))
                    if (e - 1) & 1:
                        k = (e - 1) >> 1
                        dst = b + 8 * (k >> 2) + (k & 3)
                        items.append(("cvt", f"v_cvt_pk_bf16_f32 {vr(dst)}, {vr(b + e - 2)}, {vr(b + e - 1)}", n, e))
                gaps[g].extend(items)

    def loop_body(self):
        o = self.o
        G0 = o.g0
        mf = []
        for n in range(5):
            p = (n - 1) % 5
            q = (n + 1) % 5
            for f in range(8):
                mf.append(pv_mfma(UT[p], UB[p], f))
            for s in range(8):
                mf.append(qk_mfma(UT[q], UB[q], s, vr(vNM + 16 * UT[q], 16)))
        sm = [[] for _ in range(80)]
        self.softmax_fill(sm, G0)
        for g in range(80):
            sm[g].sort(key=lambda it: {"add": 0, "cvt": 1, "exp": 2}[it[0]] if o.exp_last else {"exp": 0, "add": 1, "cvt": 2}[it[0]])
        pre = [[] for _ in range(80)]
        fill = [[] for _ in range(80)]

        def G(st, g):
            return 16 * st + g

        for st in (0, 3):
            for k in range(16):
                g = max(k >> 1, (k * 3) // 4)
                fill[G(st, g)].append(v_read(k))
        pre[G(1, 0)].append("s_waitcnt lgkmcnt(0)")
        for s in range(8):
            fill[G(1, 8 + s)].append(k_read(s))
            fill[G(4, s >> 1)].append(k_read(s))
        pre[G(2, 8)].append("s_waitcnt lgkmcnt(0)")
        pre[G(4, 8)].append("s_waitcnt lgkmcnt(0)")
        for s in range(8):
            fill[G(1, s)].append(f"v_add_u32 {vr(vKA + s)}, {sr(sD1)}, {vr(vKA + s)}")
            fill[G(2, 2 * s)].append(f"v_add_u32 {vr(vKA + s)}, {sr(sD2)}, {vr(vKA + s)}")
        for x in range(4):
            fill[G(2, 4 * x + 3)].append(f"v_add_u32 {vr(vVA + x)}, {sr(sD1)}, {vr(vVA + x)}")
            fill[G(4, 4 + 2 * x)].append(f"v_add_u32 {vr(vVA + x)}, {sr(sD2)}, {vr(vVA + x)}")
        fill[G(0, 12)] += [f"s_add_u32 {sr(sRd)}, {sr(sRd)}, {SLOT}", f"s_cmp_ge_u32 {sr(sRd)}, {RING}"]
        fill[G(0, 13)] += [f"s_cselect_b32 {sr(sD2)}, {sr(sDneg)}, {sr(sDpos)}", f"s_cselect_b32 {sr(sRd)}, 0, {sr(sRd)}"]
        if not o.nodma:
            pos = o.dmapos
            for idx, g in enumerate(pos):
                half, i = idx >> 2, idx & 3
                if i == 0:
                    fill[g - 1].append(self.m0set(half))
                fill[g].append(self.dma(half, i))
            adv = self.item_advance()
            g = pos[-1] + 1
            fill[g] += adv[0:2]
            fill[g + 1] += adv[2:5]
        bar = []
        fill[G(3, 14)].append(f"s_cmp_lt_u32 {sr(sJ)}, {sr(sRelax)}")
        if not o.nodma:
            bar += [f"s_waitcnt vmcnt({24 + 20}) lgkmcnt(0)", "s_cbranch_scc1 L_relaxed", "s_waitcnt vmcnt(24)", "L_relaxed:"]
        else:
            bar += ["s_waitcnt lgkmcnt(0)"]
        if not o.nobar:
            bar += ["s_barrier"]
        fill[G(3, 15)] += bar
        fill[G(4, 13)] += [f"s_add_u32 {sr(sJ)}, {sr(sJ)}, 1"]
        fill[G(4, 15)] += [f"s_cmp_lt_u32 {sr(sJ)}, 12", "s_cbranch_scc1 L_loop"]
        body = []
        for g in range(80):
            body += pre[g]
            if not o.nomfma:
                body.append(mf[g])
            if not o.nosm:
                body += [it[1] for it in sm[g]]
            body += fill[g]
        tail = []
        for g in range(8):
            tail.append(mf[g])
            its = [it[1] for it in sm[g] if it[2] == 4]
            tail += its
            if g <= G0 + 1:
                tail.append("s_nop 1")
        pend = [e for e in range(16) if 16 * 4 + G0 + e >= 80]
        return body, tail, pend

    def gen(self):
        o = self.o
        a = self.a
        body, tail, pend = self.loop_body()
        check_hazards(body)

        a(f"""
        s_cmp_ge_u32 s2, 256
        s_cbranch_scc1 L_exit
        s_load_dwordx8 s[4:11], s[0:1], 0
        """)
        if o.stamps:
            a(f"s_load_dwordx2 {sr(sDbg, 2)}, s[0:1], 40")
            self.stamp(0)
        a(f"""
        v_lshrrev_b32 {vr(vX)}, 6, v0
        v_and_b32 v0, 63, v0
        s_nop 0
        v_readfirstlane_b32 {sr(sW)}, {vr(vX)}
        s_nop 3
        s_lshr_b32 {sr(sG)}, {sr(sW)}, 1
        s_lshl_b32 {sr(sW4096)}, {sr(sW)}, 12
        """)
        x0, x1, x2, x3 = vX, vX + 1, vX + 2, vX + 3
        a(f"""
        v_bfe_u32 {vr(x0)}, v0, 4, 1
        v_mul_u32_u24 {vr(x0)}, 5, {vr(x0)}
        v_bfe_u32 {vr(x1)}, v0, 5, 1
        v_lshl_or_b32 {vr(x0)}, {vr(x1)}, 3, {vr(x0)}
        s_lshl_b32 {sr(sT0)}, {sr(sW)}, 1
        v_xor_b32 {vr(x0)}, {sr(sT0)}, {vr(x0)}
        v_and_b32 {vr(x1)}, 15, v0
        v_xor_b32 {vr(x0)}, {vr(x0)}, {vr(x1)}
        v_lshlrev_b32 {vr(x0)}, 4, {vr(x0)}
        v_lshrrev_b32 {vr(x1)}, 4, v0
        v_lshl_or_b32 {vr(x0)}, {vr(x1)}, 8, {vr(x0)}
        v_add_u32 {vr(vDma)}, {sr(sW4096)}, {vr(x0)}
        """)
        a(f"""
        s_waitcnt lgkmcnt(0)
        s_lshl_b32 {sr(sT0)}, s2, 19
        s_add_u32 {sr(sKS)}, {sr(sK)}, {sr(sT0)}
        s_addc_u32 {sr(sKS + 1)}, {sr(sK + 1)}, 0
        s_mov_b32 {sr(sKS + 2)}, {2 * 262144}
        s_mov_b32 {sr(sKS + 3)}, 0x00020000
        s_add_u32 {sr(sVB)}, {sr(sV)}, {sr(sT0)}
        s_addc_u32 {sr(sVB + 1)}, {sr(sV + 1)}, 0
        s_mov_b32 {sr(sA + 3)}, 0x00020000
        s_mov_b32 {sr(sB + 3)}, 0x00020000
        s_mov_b32 {sr(sO + 3)}, 0x00020000
        s_mov_b32 {sr(sO + 2)}, {QBYTES}
        s_mov_b32 {sr(sO)}, {sr(sOUT)}
        s_mov_b32 {sr(sO + 1)}, {sr(sOUT + 1)}
        s_mov_b32 {sr(sBad)}, 0
        s_mov_b32 {sr(sRedo)}, 0
        s_mov_b32 {sr(sHl)}, 0
        s_mov_b32 {sr(sPl)}, 0
        """)
        a.label("L_start")
        a(f"""
        s_lshl_b32 {sr(sHead)}, s2, 1
        s_add_u32 {sr(sHead)}, {sr(sHead)}, {sr(sHl)}
        s_mul_i32 {sr(sT0)}, {sr(sHead)}, {QBYTES}
        s_add_u32 {sr(sQn)}, {sr(sQ)}, {sr(sT0)}
        s_addc_u32 {sr(sQn + 1)}, {sr(sQ + 1)}, 0
        s_mov_b32 {sr(sNext)}, 1
        s_mov_b32 {sr(sPrev)}, 0
        s_mov_b32 {sr(sRd)}, 0
        s_mov_b32 {sr(sWr)}, {sr(sW4096)}
        s_lshl_b32 {sr(sOffA)}, {sr(sHl)}, 18
        """)
        self.src_q01()
        self.issue_item()
        self.issue_item()
        self.src_q2()
        self.issue_item()
        self.src_kv()
        self.issue_item()
        a(f"""
        v_and_b32 {vr(x0)}, 3, v0
        v_bfe_u32 {vr(x1)}, v0, 4, 1
        v_lshl_or_b32 {vr(x0)}, {vr(x1)}, 2, {vr(x0)}
        v_bfe_u32 {vr(x1)}, v0, 2, 2
        v_lshl_or_b32 {vr(x0)}, {vr(x1)}, 4, {vr(x0)}
        v_lshlrev_b32 {vr(x0)}, 8, {vr(x0)}
        v_and_b32 {vr(x2)}, 1, v0
        v_mul_u32_u24 {vr(x2)}, 5, {vr(x2)}
        v_lshlrev_b32 {vr(x1)}, 1, {vr(x1)}
        v_xor_b32 {vr(x2)}, {vr(x2)}, {vr(x1)}
        v_bfe_u32 {vr(x1)}, v0, 1, 1
        v_lshl_or_b32 {vr(x2)}, {vr(x1)}, 3, {vr(x2)}
        v_lshrrev_b32 {vr(x3)}, 5, v0
        v_xor_b32 {vr(x2)}, {vr(x2)}, {vr(x3)}
        v_lshl_or_b32 {vr(vKg)}, {vr(x2)}, 4, {vr(x0)}
        """)
        a(f"""
        v_lshl_or_b32 {vr(x0)}, {vr(x3)}, 4, {vr(x0)}
        s_lshl_b32 {sr(sT0)}, {sr(sW)}, 14
        s_lshl_b32 {sr(sT1)}, {sr(sG)}, 7
        s_add_u32 {sr(sT0)}, {sr(sT0)}, {sr(sT1)}
        v_add_u32 {vr(vOlo)}, {sr(sT0)}, {vr(x0)}
        v_xor_b32 {vr(vOhi)}, 0x80, {vr(vOlo)}
        v_lshlrev_b32 {vr(vLane16)}, 4, v0
        v_and_b32 {vr(x0)}, 12, v0
        v_cmp_ne_u32 {sr(sValid, 2)}, 12, {vr(x0)}
        s_lshl_b32 {sr(sT0)}, {sr(sG)}, 12
        s_sub_u32 {sr(sD1)}, 2048, {sr(sT0)}
        s_sub_u32 {sr(sDpos)}, {SLOT}, {sr(sD1)}
        s_sub_u32 {sr(sDneg)}, {(SLOT - RING) & 0xffffffff}, {sr(sD1)}
        s_mov_b32 {sr(sC)}, {CSCALE:#x}
        s_mov_b32 {sr(sC + 1)}, {CSCALE:#x}
        s_mov_b32 {sr(sLim)}, {LIMIT:#x}
        """)

        a.label("L_trans")
        self.issue_item()
        self.ring_next(sT1, sRd)
        self.ring_next(sScr, sT1)
        a(f"""
        s_cmp_eq_u32 {sr(sG)}, 0
        s_cselect_b32 {sr(sT0)}, {sr(sRd)}, {sr(sT1)}
        s_and_b32 {sr(sT2)}, {sr(sW)}, 1
        s_lshl_b32 {sr(sT3)}, {sr(sT2)}, 14
        s_add_u32 {sr(sT0)}, {sr(sT0)}, {sr(sT3)}
        """)
        self.set_kaddr(sT0)
        a(f"""
        s_lshl_b32 {sr(sT3)}, {sr(sT2)}, 11
        s_add_u32 {sr(sT3)}, {sr(sT3)}, {sr(sScr)}
        s_sub_u32 {sr(sT2)}, {sr(sT3)}, {sr(sT0)}
        """)
        self.ring_next(sRd, sScr)
        a(f"""
        v_mov_b32 {vr(x0)}, {vr(vL + 2)}
        v_mov_b32 {vr(x1)}, {vr(vL + 2)}
        s_add_u32 {sr(sT1)}, {sr(sScr)}, {sr(sW4096)}
        v_lshrrev_b32 {vr(x2)}, 1, {vr(vLane16)}
        v_permlane32_swap_b32 {vr(x0)}, {vr(x1)}
        v_add_u32 {vr(x2)}, {sr(sT1)}, {vr(x2)}
        v_add_f32 {vr(x1)}, {vr(x0)}, {vr(x1)}
        v_mov_b32 {vr(x0)}, {vr(vM + 2)}
        s_waitcnt vmcnt(16)
        s_barrier
        """)
        self.stamp(1)
        a(f"ds_write_b64 {vr(x2)}, {vr(x0, 2)} offset:16384")
        for t in range(2):
            for s in range(8):
                a(k_read(s, 2048 * t, vr(vQ + 32 * t + 4 * s, 4)))
        for s in range(8):
            a(f"v_add_u32 {vr(vKA + s)}, {sr(sT2)}, {vr(vKA + s)}")
            a(k_read(s, 0, vr(vQ + 64 + 4 * s, 4)))
        a(f"""
        s_lshl_b32 {sr(sT0)}, {sr(sG)}, 11
        s_add_u32 {sr(sT0)}, {sr(sT0)}, {sr(sRd)}
        s_sub_u32 {sr(sT2)}, {sr(sT0)}, {sr(sT3)}
        """)
        for s in range(8):
            a(f"v_add_u32 {vr(vKA + s)}, {sr(sT2)}, {vr(vKA + s)}")
        y0, y1, y2 = vX + 4, vX + 5, vX + 6
        a(f"""
        v_bfe_u32 {vr(y0)}, v0, 2, 2
        v_lshrrev_b32 {vr(y1)}, 5, v0
        v_lshl_or_b32 {vr(y0)}, {vr(y1)}, 4, {vr(y0)}
        v_lshlrev_b32 {vr(y0)}, 8, {vr(y0)}
        v_bfe_u32 {vr(y2)}, v0, 2, 1
        v_mul_u32_u24 {vr(y2)}, 5, {vr(y2)}
        v_lshl_or_b32 {vr(y2)}, {vr(y1)}, 1, {vr(y2)}
        v_bfe_u32 {vr(y1)}, v0, 3, 1
        v_lshl_or_b32 {vr(y2)}, {vr(y1)}, 3, {vr(y2)}
        v_bfe_u32 {vr(y1)}, v0, 4, 1
        v_lshlrev_b32 {vr(y1)}, 1, {vr(y1)}
        v_xor_b32 {vr(y2)}, {vr(y2)}, {vr(y1)}
        v_and_b32 {vr(y1)}, 1, v0
        v_xor_b32 {vr(y2)}, {vr(y2)}, {vr(y1)}
        v_lshl_or_b32 {vr(y0)}, {vr(y2)}, 4, {vr(y0)}
        v_bfe_u32 {vr(y1)}, v0, 1, 1
        v_lshl_or_b32 {vr(y0)}, {vr(y1)}, 3, {vr(y0)}
        s_lshl_b32 {sr(sT1)}, {sr(sG)}, 7
        v_xor_b32 {vr(y0)}, {sr(sT1)}, {vr(y0)}
        """)
        for x in range(4):
            a(f"v_xor_b32 {vr(vVA + x)}, {x << 6}, {vr(y0)}")
        for x in range(4):
            a(f"v_add_u32 {vr(vVA + x)}, {sr(sT0)}, {vr(vVA + x)}")
        a(f"""
        s_waitcnt lgkmcnt(0)
        s_barrier
        """)
        self.issue_item()
        self.issue_item()
        a(f"""
        s_mov_b32 {sr(sRelax)}, 0
        s_cmp_eq_u32 {sr(sPrev)}, 0
        s_cbranch_scc1 L_noepi
        """)
        self.epilogue()
        a(f"""
        s_mov_b32 {sr(sRelax)}, 3
        s_cmp_eq_u32 {sr(sNext)}, 0
        s_cbranch_scc1 L_end
        s_waitcnt vmcnt({24 + 20})
        s_branch L_pro
        """)
        a.label("L_noepi")
        a("s_waitcnt vmcnt(24)")
        a.label("L_pro")
        a("s_barrier")
        self.stamp(2)
        self.prologue(pend)
        self.stamp(3)
        a(".p2align 6")
        a.label("L_loop")
        for ln in body:
            a(ln)
        a(f"""
        s_cmp_eq_u32 {sr(sJ)}, 13
        s_cbranch_scc1 L_loop
        s_cmp_eq_u32 {sr(sJ)}, 12
        s_cbranch_scc0 L_sp14
        """)
        self.src_q01()
        a("s_branch L_loop")
        a.label("L_sp14")
        a(f"""
        s_cmp_eq_u32 {sr(sJ)}, 14
        s_cbranch_scc0 L_sp15
        """)
        self.src_q2()
        a("s_branch L_loop")
        a.label("L_sp15")
        a(f"""
        s_cmp_eq_u32 {sr(sJ)}, 15
        s_cbranch_scc0 L_done
        """)
        self.src_kv()
        a("s_branch L_loop")
        a.label("L_done")
        for ln in tail:
            a(ln)
        self.stamp(4)
        a(f"""
        s_mov_b32 {sr(sPrev)}, 1
        s_branch L_trans
        """)
        a.label("L_end")
        if o.stamps:
            self.stamp(5)
            self.dump_stamps()
        a(f"""
        s_waitcnt vmcnt(0) lgkmcnt(0)
        s_barrier
        v_mov_b32 {vr(x0)}, {sr(sBad)}
        s_lshl_b32 {sr(sT0)}, {sr(sW)}, 2
        v_mov_b32 {vr(x1)}, {sr(sT0)}
        ds_write_b32 {vr(x1)}, {vr(x0)}
        v_mov_b32 {vr(x1)}, 0
        s_waitcnt lgkmcnt(0)
        s_barrier
        ds_read_b128 {vr(vT, 4)}, {vr(x1)}
        s_waitcnt lgkmcnt(0)
        v_or_b32 {vr(x0)}, {vr(vT)}, {vr(vT + 1)}
        v_or3_b32 {vr(x0)}, {vr(x0)}, {vr(vT + 2)}, {vr(vT + 3)}
        s_nop 1
        v_readfirstlane_b32 {sr(sBad)}, {vr(x0)}
        s_nop 3
        s_cmp_eq_u32 {sr(sBad)}, 0
        s_cbranch_scc1 L_exit
        s_barrier
        s_and_b32 {sr(sT0)}, {sr(sBad)}, 1
        s_xor_b32 {sr(sHl)}, {sr(sT0)}, 1
        s_lshl_b32 {sr(sT0)}, 1, {sr(sHl)}
        s_andn2_b32 {sr(sBad)}, {sr(sBad)}, {sr(sT0)}
        s_mov_b32 {sr(sRedo)}, 1
        s_branch L_start
        """)
        a.label("L_exit")
        a("s_endpgm")

    def dump_stamps(self):
        a = self.a
        a(f"""
        s_waitcnt lgkmcnt(0)
        s_mov_b32 {sr(sDbg + 2)}, 0x100000
        s_mov_b32 {sr(sDbg + 3)}, 0x00020000
        s_lshl_b32 {sr(sT0)}, s2, 2
        s_add_u32 {sr(sT0)}, {sr(sT0)}, {sr(sW)}
        s_lshl_b32 {sr(sT0)}, {sr(sT0)}, 6
        v_mov_b32 {vr(vX)}, {sr(sT0)}
        """)
        for i in range(6):
            a(f"v_mov_b32 {vr(vX + 2)}, {sr(sTS + 2 * i)}")
            a(f"v_mov_b32 {vr(vX + 3)}, {sr(sTS + 2 * i + 1)}")
            a(f"buffer_store_dwordx2 {vr(vX + 2, 2)}, {vr(vX)}, {sr(sDbg, 4)}, 0 offen offset:{8 * i}")
            a("s_nop 1")

    def rowsum(self, dst, src, tmp):
        a = self.a
        a(f"""
        v_mov_b32 {vr(dst)}, {vr(src)}
        v_mov_b32 {vr(tmp)}, {vr(src)}
        s_nop 1
        v_permlane32_swap_b32 {vr(dst)}, {vr(tmp)}
        v_add_f32 {vr(dst)}, {vr(dst)}, {vr(tmp)}
        """)

    def epilogue(self):
        a = self.a
        x0, x1, x2, x3 = vX, vX + 1, vX + 2, vX + 3
        y0, y1, y2, y3 = vX + 4, vX + 5, vX + 6, vX + 7
        a(f"""
        s_xor_b32 {sr(sT0)}, {sr(sW4096)}, 8192
        s_add_u32 {sr(sT0)}, {sr(sT0)}, {sr(sScr)}
        v_lshrrev_b32 {vr(x2)}, 1, {vr(vLane16)}
        v_add_u32 {vr(x2)}, {sr(sT0)}, {vr(x2)}
        ds_read_b64 {vr(y0, 2)}, {vr(x2)} offset:16384
        v_add_u32 {vr(x2)}, {sr(sT0)}, {vr(vLane16)}
        s_waitcnt lgkmcnt(0)
        """)
        for k in range(8):
            off = (k & 3) * 1024 + (k >> 2) * 16384
            a(f"ds_write_b128 {vr(x2)}, {ar(aO + 128 + 32 + 4 * k, 4)} offset:{off}")
        a(f"""
        s_lshl_b32 {sr(sT0)}, s2, 1
        s_add_u32 {sr(sT0)}, {sr(sT0)}, {sr(sPl)}
        s_mul_i32 {sr(sT0)}, {sr(sT0)}, {QBYTES}
        s_add_u32 {sr(sO)}, {sr(sOUT)}, {sr(sT0)}
        s_addc_u32 {sr(sO + 1)}, {sr(sOUT + 1)}, 0
        """)
        a(f"""
        v_max_f32 {vr(x3)}, {vr(x0)}, {vr(y0)}
        v_sub_f32 {vr(x0)}, {vr(x0)}, {vr(x3)}
        v_sub_f32 {vr(y0)}, {vr(y0)}, {vr(x3)}
        v_exp_f32 {vr(x0)}, {vr(x0)}
        v_exp_f32 {vr(y0)}, {vr(y0)}
        v_cmp_nlt_f32 vcc, {vr(x1)}, {sr(sLim)}
        v_mul_f32 {vr(x1)}, {vr(x1)}, {vr(x0)}
        v_fmac_f32 {vr(x1)}, {vr(y1)}, {vr(y0)}
        s_and_b64 {sr(sT2, 2)}, vcc, {sr(sValid, 2)}
        v_rcp_f32 {vr(x1)}, {vr(x1)}
        s_nop 0
        v_mul_f32 {vr(x0)}, {vr(x0)}, {vr(x1)}
        v_mul_f32 {vr(y0)}, {vr(y0)}, {vr(x1)}
        """.replace(f"v_cmp_nlt_f32 vcc, {vr(x1)}, {sr(sLim)}", f"v_cmp_ngt_f32 vcc, {sr(sLim)}, {vr(x1)}"))
        a(f"""
        s_waitcnt lgkmcnt(0)
        s_barrier
        s_add_u32 {sr(sT0)}, {sr(sW4096)}, {sr(sScr)}
        v_add_u32 {vr(x2)}, {sr(sT0)}, {vr(vLane16)}
        """)
        for k in range(8):
            off = (k & 3) * 1024 + (k >> 2) * 16384
            a(f"ds_read_b128 {vr(vS + 4 * k, 4)}, {vr(x2)} offset:{off}")
        tset = 0
        for t in range(2):
            self.rowsum(y2, vL + t, y3)
            a(f"""
            v_cmp_ngt_f32 vcc, {sr(sLim)}, {vr(y2)}
            v_rcp_f32 {vr(y2)}, {vr(y2)}
            s_or_b64 {sr(sT2, 2)}, {sr(sT2, 2)}, vcc
            """)
            for i in range(4):
                for e in range(2):
                    tb = vT + 8 * tset
                    tset = (tset + 1) & 3
                    base = aO + 64 * t + 16 * i + 8 * e
                    for r in range(8):
                        a(f"v_accvgpr_read_b32 {vr(tb + r)}, {ar(base + r)}")
                    for r in range(4):
                        a(f"v_pk_mul_f32 {vr(tb + 2 * r, 2)}, {vr(tb + 2 * r, 2)}, {vr(y2, 2)} op_sel_hi:[1,0]")
                    for r in range(4):
                        a(f"v_cvt_pk_bf16_f32 {vr(tb + r)}, {vr(tb + 2 * r)}, {vr(tb + 2 * r + 1)}")
                    off = 2048 * t + 64 * (i & 1) + 32 * e
                    a(f"buffer_store_dwordx4 {vr(tb, 4)}, {vr(vOlo if i < 2 else vOhi)}, {sr(sO, 4)}, 0 offen offset:{off}")
        a(f"""
        s_and_b32 {sr(sT0)}, {sr(sW)}, 1
        s_lshl_b32 {sr(sT0)}, {sr(sT0)}, 11
        s_add_u32 {sr(sT0)}, {sr(sT0)}, 65536
        s_lshl_b32 {sr(sT1)}, {sr(sW)}, 14
        s_sub_u32 {sr(sT0)}, {sr(sT0)}, {sr(sT1)}
        v_add_u32 {vr(x2)}, {sr(sT0)}, {vr(vOlo)}
        s_waitcnt lgkmcnt(0)
        """)
        for i in range(2):
            for e in range(2):
                tb = vT + 8 * tset
                tset = (tset + 1) & 3
                base = aO + 128 + 16 * i + 8 * e
                pb = vS + 16 * i + 8 * e
                for r in range(8):
                    a(f"v_accvgpr_read_b32 {vr(tb + r)}, {ar(base + r)}")
                for r in range(8):
                    a(f"v_mul_f32 {vr(tb + r)}, {vr(tb + r)}, {vr(x0)}")
                for r in range(8):
                    a(f"v_fmac_f32 {vr(tb + r)}, {vr(pb + r)}, {vr(y0)}")
                for r in range(4):
                    a(f"v_cvt_pk_bf16_f32 {vr(tb + r)}, {vr(tb + 2 * r)}, {vr(tb + 2 * r + 1)}")
                off = 64 * i + 32 * e
                a(f"buffer_store_dwordx4 {vr(tb, 4)}, {vr(x2)}, {sr(sO, 4)}, 0 offen offset:{off}")
        a(f"""
        s_cmp_lg_u64 {sr(sT2, 2)}, 0
        s_cselect_b32 {sr(sT0)}, 1, 0
        s_lshl_b32 {sr(sT0)}, {sr(sT0)}, {sr(sPl)}
        s_cmp_eq_u32 {sr(sRedo)}, 0
        s_cselect_b32 {sr(sT0)}, {sr(sT0)}, 0
        s_or_b32 {sr(sBad)}, {sr(sBad)}, {sr(sT0)}
        """)

    def prologue(self, pend):
        a = self.a
        x0, x1, x2, x3 = vX, vX + 1, vX + 2, vX + 3
        a(f"""
        s_cmp_eq_u32 {sr(sPrev)}, 0
        s_cselect_b32 {sr(sPl)}, {sr(sHl)}, 1
        s_or_b32 {sr(sT0)}, {sr(sPl)}, {sr(sRedo)}
        s_xor_b32 {sr(sNext)}, {sr(sT0)}, 1
        s_add_u32 {sr(sQn)}, {sr(sQn)}, {QBYTES}
        s_addc_u32 {sr(sQn + 1)}, {sr(sQn + 1)}, 0
        s_mov_b32 {sr(sJ)}, 0
        """)
        for r in range(4):
            a(f"v_mov_b32 {vr(vT + r)}, 0")
        a("s_nop 1")
        zl = [f"{MFMA} {ar(16 * i, 16)}, {vr(vT, 4)}, {vr(vT, 4)}, 0" for i in list(range(12)) + [14, 15]]
        k = 0
        for d in range(0, 96, 2):
            t0 = vT + 4 + 4 * ((d >> 1) & 3)
            for u in range(2):
                a(f"v_lshlrev_b32 {vr(t0 + 2 * u)}, 16, {vr(vQ + d + u)}")
                a(f"v_and_b32 {vr(t0 + 2 * u + 1)}, 0xffff0000, {vr(vQ + d + u)}")
            for u in range(2):
                a(f"v_pk_mul_f32 {vr(t0 + 2 * u, 2)}, {vr(t0 + 2 * u, 2)}, {sr(sC, 2)}")
            for u in range(2):
                a(f"v_cvt_pk_bf16_f32 {vr(vQ + d + u)}, {vr(t0 + 2 * u)}, {vr(t0 + 2 * u + 1)}")
            if k < len(zl):
                a(zl[k])
                k += 1
        for t in range(3):
            a(f"v_mov_b32 {vr(vM + t)}, {NEGINF:#x}")
            a(f"v_mov_b32 {vr(vL + t)}, 0")
        a(f"""
        s_lshl_b32 {sr(sT3)}, {sr(sRedo)}, 5
        s_lshl_b32 {sr(sT2)}, {sr(sPl)}, 18
        v_and_b32 {vr(x0)}, 31, v0
        v_lshlrev_b32 {vr(x0)}, 8, {vr(x0)}
        v_lshrrev_b32 {vr(x1)}, 5, v0
        v_lshl_or_b32 {vr(x0)}, {vr(x1)}, 4, {vr(x0)}
        """)
        a.label("L_max")
        a(f"""
        s_cmp_eq_u32 {sr(sT3)}, 0
        s_cbranch_scc1 L_maxlds
        """)
        for s in range(8):
            a(f"buffer_load_dwordx4 {ar(aK + 4 * s, 4)}, {vr(x0)}, {sr(sKS, 4)}, {sr(sT2)} offen offset:{32 * s}")
        a(f"""
        s_add_u32 {sr(sT2)}, {sr(sT2)}, 8192
        s_waitcnt vmcnt(0)
        s_branch L_maxgo
        """)
        a.label("L_maxlds")
        for s in range(8):
            a(k_read(s))
        a("s_waitcnt lgkmcnt(0)")
        a.label("L_maxgo")
        for t in range(3):
            for s in range(8):
                a(qk_mfma(t, t, s, "0"))
        a("s_nop 7")
        for t in range(3):
            if t == 2:
                a("s_nop 7")
            b = vS + 16 * t
            for e in range(0, 16, 2):
                a(f"v_max3_f32 {vr(vM + t)}, {vr(vM + t)}, {vr(b + e)}, {vr(b + e + 1)}")
        a(f"""
        s_cmp_eq_u32 {sr(sT3)}, 0
        s_sub_u32 {sr(sT3)}, {sr(sT3)}, 1
        s_cbranch_scc0 L_max
        """)
        for t in range(3):
            a(f"""
            v_mov_b32 {vr(x1)}, {vr(vM + t)}
            s_nop 1
            v_permlane32_swap_b32 {vr(vM + t)}, {vr(x1)}
            v_max_f32 {vr(vM + t)}, {vr(vM + t)}, {vr(x1)}
            """)
            for r in range(16):
                a(f"v_sub_f32 {vr(vNM + 16 * t + r)}, 0, {vr(vM + t)}")
        for e in range(16):
            a(f"v_sub_f32 {vr(vS + e)}, {vr(vS + e)}, {vr(vM)}")
        for e in range(16):
            a(f"v_mov_b32 {vr(vS + 32 + e)}, {NEGINF:#x}" if e in pend else f"v_mov_b32 {vr(vS + 32 + e)}, 0")
        a("s_nop 1")

    def text(self):
        return (HEADER + f""".amdgcn_target "amdgcn-amd-amdhsa--gfx950"
.text
.globl {NAME}_kernel
.p2align 8
.type {NAME}_kernel,@function
{NAME}_kernel:
""" + self.a.text() + f""".section .rodata,"a"
.p2align 6
.amdhsa_kernel {NAME}_kernel
  .amdhsa_next_free_vgpr 512
  .amdhsa_next_free_sgpr {NSGPR}
  .amdhsa_accum_offset 256
  .amdhsa_group_segment_fixed_size 0
  .amdhsa_kernarg_size 48
  .amdhsa_user_sgpr_count 2
  .amdhsa_user_sgpr_kernarg_segment_ptr 1
  .amdhsa_system_sgpr_workgroup_id_x 1
.end_amdhsa_kernel
""")


_REG = re.compile(r"\b([va])(?:(\d+)|\[(\d+):(\d+)\])")


def regs(op):
    m = _REG.fullmatch(op.strip())
    if not m:
        return set()
    lo = int(m.group(2) or m.group(3))
    hi = int(m.group(2) or m.group(4))
    return {(m.group(1), i) for i in range(lo, hi + 1)}


def check_hazards(body):
    ins = [ln for ln in body if not ln.endswith(":")]
    seq = ins + ins
    info = []
    for ln in seq:
        mn, _, rest = ln.partition(" ")
        ops = [x.strip().split(" ")[0] for x in rest.split(",")] if rest else []
        info.append((mn, ops, ln))

    def states(i, j):
        n = 0
        for k in range(i + 1, j):
            mn, ops, _ = info[k]
            n += int(ops[0]) + 1 if mn == "s_nop" else 1
        return n

    N = len(seq)
    for i, (mn, ops, ln) in enumerate(info[: len(ins)]):
        if mn.startswith("v_mfma"):
            d = regs(ops[0])
            c = regs(ops[3])
            for j in range(i + 1, min(N, i + 20)):
                mn2, ops2, ln2 = info[j]
                if mn2.startswith("v_mfma"):
                    if (regs(ops2[1]) | regs(ops2[2])) & d and states(i, j) < 12:
                        raise SystemExit(f"hazard mfma D->AB: {ln} -> {ln2}")
                    c2 = regs(ops2[3])
                    if c2 & d and c2 != d and states(i, j) < 10:
                        raise SystemExit(f"hazard mfma D->C overlap: {ln} -> {ln2}")
                elif mn2.startswith("v_") or mn2.startswith("ds_") or mn2.startswith("buffer_"):
                    touched = set()
                    for o_ in ops2:
                        touched |= regs(o_)
                    if touched & d and states(i, j) < 12:
                        raise SystemExit(f"hazard mfma D->valu ({states(i, j)}): {ln} -> {ln2}")
                    if mn2.startswith("v_") and regs(ops2[0]) & c and states(i, j) < 7:
                        raise SystemExit(f"hazard mfma C war: {ln} -> {ln2}")
        elif mn.startswith("v_"):
            d = regs(ops[0])
            for j in range(i + 1, min(N, i + 4)):
                mn2, ops2, ln2 = info[j]
                if mn2.startswith("v_mfma"):
                    if (regs(ops2[1]) | regs(ops2[2]) | regs(ops2[3])) & d and states(i, j) < 2:
                        raise SystemExit(f"hazard valu->mfma: {ln} -> {ln2}")
                elif mn in ("v_exp_f32", "v_rcp_f32") and mn2.startswith("v_") and states(i, j) < 1:
                    src = set()
                    for o_ in ops2[1:]:
                        src |= regs(o_)
                    if src & d:
                        raise SystemExit(f"hazard trans->valu: {ln} -> {ln2}")
        elif mn.startswith("s_") and ops and ops[0] == "m0":
            mn2 = info[i + 1][0]
            if mn2.startswith("buffer_"):
                raise SystemExit(f"hazard m0: {ln}")


def main():
    p = argparse.ArgumentParser()
    p.add_argument("-o", default=f"cdna_kernels/{NAME}.s")
    p.add_argument("--nt", type=int, default=1)
    p.add_argument("--g0", type=int, default=2)
    p.add_argument("--exp_last", type=int, default=1)
    p.add_argument("--dmapos", type=lambda s: [int(x) for x in s.split(",")], default=[14, 18, 22, 33, 37, 41, 45, 60])
    p.add_argument("--nodma", type=int, default=0)
    p.add_argument("--nobar", type=int, default=0)
    p.add_argument("--nomfma", type=int, default=0)
    p.add_argument("--nosm", type=int, default=0)
    p.add_argument("--stamps", type=int, default=0)
    o = p.parse_args()
    g = Gen(o)
    g.gen()
    open(o.o, "w").write(g.text())


if __name__ == "__main__":
    main()
```

```python
import argparse
import re
import struct

NAME = "standalone__mha_softmax__near_ridge"

HEADER = """; Kernarg layout for this problem (48 bytes, ptrs only, base s[0:1]):
; @launch grid=(256,1,1) block=(256,1,1) lds=163840
"""

QBYTES = 304 * 256
SLOT = 32768
NSLOT = 3
RING = SLOT * NSLOT
QREG = RING
NST = 16


def f2u(x):
    return struct.unpack("<I", struct.pack("<f", x))[0]


CSCALE = f2u((128.0 ** -0.5) * 1.4426950408889634)
LIMIT = f2u(2.0 ** 40)
NEGINF = 0xFF800000

sQ, sK, sV, sOUT = 4, 6, 8, 10
sA, sB, sO, sQS = 12, 16, 20, 24
sOff, sQoff, sQm0, sStop = 28, 29, 30, 31
sQstop, sSize = 32, 33
sRd, sWr, sW4096, sJ = 34, 35, 36, 37
sDel = 38
sMask = 39
sEo = 40
sRelax, sBad, sRedo = 44, 45, 46
sW, sNext, sPrev = 47, 48, 49
sC = 50
sT0, sT1, sT2, sT3 = 54, 55, 56, 57
sQn = 58
sR0 = 59
sLim = 62
sHl = 63
sPl = 64
sDbg = 68
sTS = 72
NSGPR = 80

vDma = 1
vKA = 2
vVA = 6
vL = 14
vM = 19
vKg, vQ4, vEw, vEr, vLane16 = 24, 25, 26, 27, 28
vX = 29
vQ = 32
vNM = 112
vZ = 132
vS = 136
vK = 184
vT = 248
vST = 252
aO = 0
aV = 160
aQ4 = 224

UB = [0, 1, 0, 1, 2]
M16 = "v_mfma_f32_16x16x32_bf16"
M32 = "v_mfma_f32_32x32x16_bf16"
EROW = 272


class Asm:
    def __init__(self):
        self.lines = []

    def __call__(self, s):
        for ln in s.strip("\n").split("\n"):
            ln = ln.strip()
            if ln:
                self.lines.append(ln)

    def label(self, n):
        self.lines.append(n + ":")

    def text(self):
        out = []
        for ln in self.lines:
            out.append(ln if ln.endswith(":") or ln.startswith(".") else "    " + ln)
        return "\n".join(out) + "\n"


def vr(b, n=1):
    return f"v{b}" if n == 1 else f"v[{b}:{b + n - 1}]"


def ar(b, n=1):
    return f"a{b}" if n == 1 else f"a[{b}:{b + n - 1}]"


def sr(b, n=1):
    return f"s{b}" if n == 1 else f"s[{b}:{b + n - 1}]"


def qk_mfma(u, dst, x, cinit):
    c = x & 3
    d = vr(dst, 4)
    return f"{M16} {d}, {vr(vK + 4 * x, 4)}, {vr(vQ + 16 * u + 4 * c, 4)}, {d if c else cinit}"


def pv_mfma(u, f):
    dt, t = f >> 1, f & 1
    d = ar(aO + 32 * u + 4 * dt, 4)
    return f"{M16} {d}, {ar(aV + 4 * f, 4)}, {vr(vS + 16 * UB[u] + 8 * t, 4)}, {d}"


def k_read(x, dst=None, kt=None):
    c = x & 3
    kt = x >> 2 if kt is None else kt
    dst = dst if dst is not None else vK + 4 * x
    return f"ds_read_b128 {vr(dst, 4)}, {vr(vKA + c)}" + (f" offset:{1024 * kt}" if kt else "")


def v_read(k):
    f, jj = k >> 1, k & 1
    dt, t = f >> 1, f & 1
    off = 16384 + 1024 * (2 * t + jj)
    return f"ds_read_b64_tr_b16 {ar(aV + 4 * f + 2 * jj, 2)}, {vr(vVA + dt)} offset:{off}"


class Gen:
    def __init__(self, opt):
        self.o = opt
        self.a = Asm()

    def dma(self, half, i):
        srd = sA if half == 0 else sB
        nt = " nt" if self.o.nt else ""
        o = f" offset:{1024 * i}" if i else ""
        return f"buffer_load_dwordx4 {vr(vDma)}, {sr(srd, 4)}, {sr(sOff)} offen{o}{nt} lds"

    def qdma(self, i=0):
        nt = " nt" if self.o.nt else ""
        o = f" offset:{1024 * i}" if i else ""
        return f"buffer_load_dwordx4 {vr(vDma)}, {sr(sQS, 4)}, {sr(sQoff)} offen{o}{nt} lds"

    def m0set(self, half):
        return f"s_mov_b32 m0, {sr(sWr)}" if half == 0 else f"s_add_u32 m0, {sr(sWr)}, 16384"

    def item_advance(self):
        return [
            f"s_add_u32 {sr(sOff)}, {sr(sOff)}, 16384",
            f"s_add_u32 {sr(sWr)}, {sr(sWr)}, {SLOT}",
            f"s_cmp_ge_u32 {sr(sWr)}, {RING}",
            f"s_cselect_b32 {sr(sWr)}, {sr(sW4096)}, {sr(sWr)}",
        ]

    def item_lines(self):
        L = []
        for half in (0, 1):
            L.append([self.m0set(half), "s_nop 0", self.dma(half, 0)])
            for i in range(1, 4):
                L.append([self.dma(half, i)])
        L[-1] += self.item_advance()
        return L

    def issue_item(self):
        for g in self.item_lines():
            for ln in g:
                self.a(ln)

    def q4_loads(self):
        nt = " nt" if self.o.nt else ""
        return [f"buffer_load_dwordx4 {ar(aQ4 + 4 * c, 4)}, {vr(vQ4)}, {sr(sQS, 4)}, 0 offen offset:{64 * c}{nt}" for c in range(4)]

    def ring_next(self, dst, src):
        return [f"s_add_u32 {sr(dst)}, {sr(src)}, {SLOT}",
                f"s_cmp_ge_u32 {sr(dst)}, {RING}",
                f"s_cselect_b32 {sr(dst)}, 0, {sr(dst)}"]

    def stamp_lines(self):
        return [f"s_memtime {sr(sTS, 2)}", f"s_memrealtime {sr(sTS + 2, 2)}", "s_waitcnt lgkmcnt(0)",
                f"v_mov_b32 {vr(vST)}, {sr(sTS)}", f"v_mov_b32 {vr(vST + 1)}, {sr(sTS + 2)}",
                f"buffer_store_dwordx2 {vr(vST, 2)}, {vr(vST + 2)}, {sr(sDbg, 4)}, {sr(sTS + 4)} offen",
                f"s_add_u32 {sr(sTS + 4)}, {sr(sTS + 4)}, 8"]

    def stamp(self):
        if self.o.stamps:
            for ln in self.stamp_lines():
                self.a(ln)

    def loop_body(self):
        o = self.o
        N = 160
        START = 152
        mf = []
        for n in range(5):
            p = (n - 1) % 5
            q = (n + 1) % 5
            for f in range(16):
                mf.append(pv_mfma(p, f))
            for x in range(16):
                mf.append(qk_mfma(q, vS + 16 * UB[q] + 4 * (x >> 2), x, vr(vNM + 4 * q, 4)))
        sal = [[] for _ in range(N)]
        mem = [[] for _ in range(N)]
        val = [[] for _ in range(N)]
        post = [[] for _ in range(N)]
        need = {}
        if not o.nosm:
            for n in range(5):
                b = vS + 16 * UB[n]
                for e in range(16):
                    s = (32 * n - 8 - (o.adel - 1) + 2 * e) % N
                    val[s].append(f"v_exp_f32 {vr(b + e)}, {vr(b + e)}")
                    s2 = (s + o.adel) % N
                    val[s2].append(f"v_add_f32 {vr(vL + n)}, {vr(vL + n)}, {vr(b + e)}")
                    if e & 1:
                        k = e >> 1
                        val[s2].append(f"v_cvt_pk_bf16_f32 {vr(b + 8 * (k >> 2) + (k & 3))}, {vr(b + e - 1)}, {vr(b + e)}")
        vs = o.vslots
        assert len(vs) == 32
        for k, s in enumerate(vs):
            assert s >= (k >> 1)
            mem[s].append(v_read(k))
        for f in range(0, 16, o.wstep):
            need[32 + f] = v_read(2 * (f + o.wstep - 1) + 1)
        ks = o.kslots
        assert len(ks) == 16
        for x, s in enumerate(ks):
            assert 112 + x <= s < START
            mem[s].append(k_read(x))
        for x in range(0, 16, o.wstep):
            need[144 + x] = k_read(x + o.wstep - 1)
        aslots = o.aslots
        regs_ = [vKA + 0, vKA + 1, vKA + 2, vKA + 3] + [vVA + i for i in range(8)]
        for r, s in zip(regs_, aslots):
            val[s].insert(0, f"v_add_u32 {vr(r)}, {sr(sDel)}, {vr(r)}")
        g = 114
        for i, ln in enumerate([f"s_add_u32 {sr(sRd)}, {sr(sRd)}, {sr(sDel)}",
                                f"s_cmp_ge_u32 {sr(sRd)}, {RING - SLOT}",
                                f"s_cselect_b32 {sr(sDel)}, {sr(sR0)}, {SLOT}"]):
            sal[g + i].append(ln)
        bs = o.barslot
        if not o.nodma:
            qs = o.qslot
            assert qs > bs
            for i, ln in enumerate([f"s_lshr_b32 {sr(sT0)}, {sr(sQn)}, 2",
                                    f"s_mul_i32 {sr(sT0)}, {sr(sT0)}, 12288",
                                    f"s_lshl_b32 {sr(sQoff)}, {sr(sQn)}, 10",
                                    f"s_add_u32 {sr(sQoff)}, {sr(sQoff)}, {sr(sT0)}",
                                    f"s_add_u32 {sr(sQn)}, {sr(sQn)}, 1",
                                    f"s_add_u32 m0, {sr(sQoff)}, {sr(sQm0)}"]):
                sal[10 + i].append(ln)
            sal[qs - 1].append(f"s_cmp_ge_u32 {sr(sJ)}, {sr(sQstop)}")
            sal[qs].append("s_cbranch_scc1 L_noq")
            mem[qs] += [self.qdma(), "L_noq:"]
            for i, ln in enumerate([f"s_cmp_lt_u32 {sr(sJ)}, {sr(sStop)}",
                                    f"s_cselect_b32 {sr(sA + 2)}, {sr(sSize)}, 0",
                                    f"s_mov_b32 {sr(sB + 2)}, {sr(sA + 2)}"]):
                sal[20 + i].append(ln)
            pos = o.dmapos
            assert pos[0] - 2 > qs
            for idx, s in enumerate(pos):
                half, i = idx >> 2, idx & 3
                if i == 0:
                    sal[s - 2].append(self.m0set(half))
                mem[s].append(self.dma(half, i))
            for i, ln in enumerate(self.item_advance()):
                sal[120 + i].append(ln)
        assert bs > max(vs) + 8
        sal[bs - 3].append(f"s_cmp_lg_u32 {sr(sRelax)}, 0")
        sal[bs - 1].append("s_cbranch_scc1 L_wspecial")
        sal[bs - 1].append(f"s_waitcnt vmcnt({o.vmw}) lgkmcnt(0)" if not o.nodma else "s_waitcnt lgkmcnt(0)")
        sal[bs - 1].append("L_wback:")
        if not o.nobar:
            sal[bs].insert(0, "s_barrier")
        sal[START - 4].append(f"s_add_u32 {sr(sJ)}, {sr(sJ)}, 1")
        sal[START - 1].append(f"s_cmp_lt_u32 {sr(sJ)}, 16")
        post[START - 1].append("s_cbranch_scc1 L_loop")
        if o.stamps > 1:
            post[100] += self.stamp_lines()
        order = [(START + i) % N for i in range(N)]
        body = []
        for s in order:
            if not o.nomfma:
                body.append(mf[s])
            nxt = (s + 1) % N
            if nxt in need:
                body.append(("WAIT", need[nxt]))
            body += sal[s] + mem[s] + val[s] + post[s]
        out = []
        done = set()
        for i, ln in enumerate(body):
            if isinstance(ln, tuple):
                if ln[1] in done:
                    continue
                cnt = 0
                young = 0
                nmf = 0
                j = i
                while True:
                    j = (j - 1) % len(body)
                    x = body[j]
                    if isinstance(x, tuple):
                        continue
                    if x == ln[1]:
                        break
                    if x.startswith("v_mfma"):
                        nmf += 1
                    if x.startswith("ds_"):
                        cnt += 1
                        if nmf <= o.lat:
                            young += 1
                cnt = min(cnt, young, 15)
                out.append(f"s_waitcnt lgkmcnt({cnt})")
                j = i
                k = 0
                for _ in range(len(body)):
                    j = (j - 1) % len(body)
                    x = body[j]
                    if isinstance(x, str) and x.startswith("ds_"):
                        k += 1
                        if k > cnt:
                            done.add(x)
            else:
                if ln.startswith("ds_"):
                    done.discard(ln)
                out.append(ln)
        tail = [mf[s] for s in range(16)]
        return out, tail

    def gen(self):
        o = self.o
        a = self.a
        body, tail = self.loop_body()
        if not (o.nomfma or o.nosm):
            check_hazards(body)
        check_scc(body)
        x0, x1, x2 = vX, vX + 1, vX + 2

        a("""
        s_cmp_ge_u32 s2, 256
        s_cbranch_scc1 L_exit
        s_load_dwordx8 s[4:11], s[0:1], 0
        """)
        if o.stamps:
            a(f"""
            s_load_dwordx2 {sr(sDbg, 2)}, s[0:1], 40
            s_mov_b32 {sr(sDbg + 2)}, 0x100000
            s_mov_b32 {sr(sDbg + 3)}, 0x00020000
            s_mov_b32 {sr(sTS + 4)}, 0
            v_lshrrev_b32 {vr(vST + 2)}, 6, v0
            v_lshl_add_u32 {vr(vST + 2)}, s2, 2, {vr(vST + 2)}
            v_lshlrev_b32 {vr(vST + 2)}, 9, {vr(vST + 2)}
            """)
            self.stamp()
        a(f"""
        v_lshrrev_b32 {vr(x0)}, 6, v0
        v_and_b32 v0, 63, v0
        v_lshrrev_b32 {vr(x1)}, 4, v0
        v_readfirstlane_b32 {sr(sW)}, {vr(x0)}
        v_and_b32 {vr(x2)}, 15, v0
        v_lshlrev_b32 {vr(x0)}, 1, {vr(x1)}
        v_xor_b32 {vr(x2)}, {vr(x2)}, {vr(x0)}
        s_lshl_b32 {sr(sW4096)}, {sr(sW)}, 12
        s_lshr_b32 {sr(sT0)}, {sr(sW)}, 1
        s_mul_i32 {sr(sT0)}, {sr(sT0)}, 9
        s_and_b32 {sr(sT1)}, {sr(sW)}, 1
        s_lshl_b32 {sr(sT1)}, {sr(sT1)}, 3
        s_xor_b32 {sr(sT0)}, {sr(sT0)}, {sr(sT1)}
        v_xor_b32 {vr(x2)}, {sr(sT0)}, {vr(x2)}
        v_lshlrev_b32 {vr(x2)}, 4, {vr(x2)}
        v_lshl_or_b32 {vr(x2)}, {vr(x1)}, 8, {vr(x2)}
        v_add_u32 {vr(vDma)}, {sr(sW4096)}, {vr(x2)}
        s_lshl_b32 {sr(sT0)}, s2, 19
        s_mov_b32 {sr(sSize)}, {2 * 262144}
        s_mov_b32 {sr(sA + 3)}, 0x00020000
        s_mov_b32 {sr(sB + 3)}, 0x00020000
        s_mov_b32 {sr(sO + 3)}, 0x00020000
        s_mov_b32 {sr(sQS + 3)}, 0x00020000
        s_mov_b32 {sr(sO + 2)}, {QBYTES}
        s_mov_b32 {sr(sQS + 2)}, {QBYTES}
        s_add_u32 {sr(sQm0)}, {sr(sW4096)}, {QREG}
        s_mov_b32 {sr(sBad)}, 0
        s_mov_b32 {sr(sRedo)}, 0
        s_mov_b32 {sr(sHl)}, 0
        s_mov_b32 {sr(sPl)}, 0
        v_and_b32 {vr(x0)}, 15, v0
        v_lshlrev_b32 {vr(x0)}, 8, {vr(x0)}
        v_lshl_or_b32 {vr(x0)}, {vr(x1)}, 4, {vr(x0)}
        s_add_u32 {sr(sT1)}, {sr(sW4096)}, 65536
        v_add_u32 {vr(vQ4)}, {sr(sT1)}, {vr(x0)}
        s_waitcnt lgkmcnt(0)
        s_add_u32 {sr(sA)}, {sr(sK)}, {sr(sT0)}
        s_addc_u32 {sr(sA + 1)}, {sr(sK + 1)}, 0
        s_add_u32 {sr(sB)}, {sr(sV)}, {sr(sT0)}
        s_addc_u32 {sr(sB + 1)}, {sr(sV + 1)}, 0
        s_mov_b32 {sr(sO)}, {sr(sOUT)}
        s_mov_b32 {sr(sO + 1)}, {sr(sOUT + 1)}
        """)
        a.label("L_start")
        a(f"""
        s_lshl_b32 {sr(sT0)}, s2, 1
        s_add_u32 {sr(sT0)}, {sr(sT0)}, {sr(sHl)}
        s_mul_i32 {sr(sT0)}, {sr(sT0)}, {QBYTES}
        s_add_u32 {sr(sQS)}, {sr(sQ)}, {sr(sT0)}
        s_addc_u32 {sr(sQS + 1)}, {sr(sQ + 1)}, 0
        s_mov_b32 {sr(sPrev)}, 0
        s_mov_b32 {sr(sRd)}, 0
        s_mov_b32 {sr(sDel)}, {SLOT}
        s_mov_b32 {sr(sWr)}, {sr(sW4096)}
        s_lshl_b32 {sr(sOff)}, {sr(sHl)}, 18
        s_mov_b32 {sr(sA + 2)}, {sr(sSize)}
        s_mov_b32 {sr(sB + 2)}, {sr(sSize)}
        s_mov_b32 {sr(sRelax)}, 0
        """)
        for u in range(4):
            a(f"s_mov_b32 {sr(sQoff)}, {16384 * u}")
            a(f"s_add_u32 m0, {sr(sQm0)}, {16384 * u}")
            a("s_nop 0")
            for i in range(4):
                a(self.qdma(i))
        for ln in self.q4_loads():
            a(ln)
        self.issue_item()
        self.issue_item()
        a(f"""
        v_and_b32 {vr(x0)}, 3, v0
        v_bfe_u32 {vr(x1)}, v0, 2, 2
        v_lshl_or_b32 {vr(x2)}, {vr(x1)}, 4, {vr(x0)}
        v_lshlrev_b32 {vr(vKg)}, 8, {vr(x2)}
        v_and_b32 {vr(x0)}, 7, v0
        v_lshlrev_b32 {vr(x0)}, 1, {vr(x0)}
        v_bfe_u32 {vr(x1)}, v0, 3, 1
        v_mul_u32_u24 {vr(x1)}, 9, {vr(x1)}
        v_xor_b32 {vr(x0)}, {vr(x0)}, {vr(x1)}
        v_lshrrev_b32 {vr(x1)}, 4, v0
        v_xor_b32 {vr(x0)}, {vr(x0)}, {vr(x1)}
        v_lshl_or_b32 {vr(vKg)}, {vr(x0)}, 4, {vr(vKg)}
        """)
        a(f"""
        v_bfe_u32 {vr(x0)}, v0, 2, 2
        v_lshrrev_b32 {vr(x1)}, 4, v0
        v_lshl_or_b32 {vr(x2)}, {vr(x1)}, 4, {vr(x0)}
        v_lshlrev_b32 {vr(vVA)}, 8, {vr(x2)}
        v_bfe_u32 {vr(x0)}, v0, 2, 3
        v_lshlrev_b32 {vr(x0)}, 1, {vr(x0)}
        v_lshrrev_b32 {vr(x1)}, 5, v0
        v_mul_u32_u24 {vr(x1)}, 9, {vr(x1)}
        v_xor_b32 {vr(x0)}, {vr(x0)}, {vr(x1)}
        v_bfe_u32 {vr(x1)}, v0, 1, 1
        v_xor_b32 {vr(x0)}, {vr(x0)}, {vr(x1)}
        v_lshl_or_b32 {vr(vVA)}, {vr(x0)}, 4, {vr(vVA)}
        v_and_b32 {vr(x1)}, 1, v0
        v_lshl_or_b32 {vr(vVA)}, {vr(x1)}, 3, {vr(vVA)}
        """)
        a(f"""
        v_and_b32 {vr(x0)}, 15, v0
        v_lshrrev_b32 {vr(x1)}, 4, v0
        v_mul_u32_u24 {vr(vEw)}, {EROW}, {vr(x0)}
        v_lshl_add_u32 {vr(vEw)}, {vr(x1)}, 3, {vr(vEw)}
        v_mul_u32_u24 {vr(vEr)}, {EROW}, {vr(x1)}
        v_lshl_add_u32 {vr(vEr)}, {vr(x0)}, 4, {vr(vEr)}
        v_lshlrev_b32 {vr(vLane16)}, 4, v0
        s_mov_b32 {sr(sC)}, {CSCALE:#x}
        s_mov_b32 {sr(sC + 1)}, {CSCALE:#x}
        s_mov_b32 {sr(sLim)}, {LIMIT:#x}
        s_mov_b32 {sr(sMask)}, 0xffff0000
        s_mov_b32 {sr(sR0)}, {(SLOT - RING) & 0xffffffff:#x}
        s_lshl_b32 {sr(sT0)}, {sr(sW)}, 14
        s_add_u32 {sr(sT0)}, {sr(sT0)}, {QREG}
        v_add_u32 {vr(vEw)}, {sr(sT0)}, {vr(vEw)}
        v_add_u32 {vr(vEr)}, {sr(sT0)}, {vr(vEr)}
        """)
        for c in range(4):
            a(f"v_xor_b32 {vr(vKA + c)}, {c << 6}, {vr(vKg)}")
        for d in range(1, 8):
            a(f"v_xor_b32 {vr(vVA + d)}, {d << 5}, {vr(vVA)}")
        a(f"v_add_u32 {vr(vKg)}, {sr(sT0)}, {vr(vKg)}")
        for r in range(4):
            a(f"v_mov_b32 {vr(vZ + r)}, 0")
        for ln in self.q_addr():
            a(ln)
        a("""
        s_waitcnt vmcnt(20)
        s_barrier
        """)
        self.stamp()
        for ln in self.q_reads():
            a(ln)
        a("s_branch L_pro")
        a.label("L_trans")
        self.stamp()
        self.epilogue()
        a(f"""
        s_mov_b32 {sr(sRelax)}, 2
        s_cmp_eq_u32 {sr(sNext)}, 0
        s_cbranch_scc1 L_end
        """)
        a.label("L_pro")
        self.stamp()
        self.prologue()
        self.stamp()
        a(".p2align 6")
        a.label("L_loop")
        for ln in body:
            a(ln)
        self.stamp()
        qa = self.q_addr()
        qr = self.q_reads()
        for i in range(16):
            a(tail[i])
            if i == 0:
                for ln in qa:
                    a(ln)
            elif i <= 8:
                a(qr[2 * i - 2])
                a(qr[2 * i - 1])
        a(f"""
        s_mov_b32 {sr(sPrev)}, 1
        s_branch L_trans
        """)
        a.label("L_wspecial")
        a(f"""
        s_waitcnt vmcnt({8 + NST}) lgkmcnt(0)
        s_sub_u32 {sr(sRelax)}, {sr(sRelax)}, 1
        s_branch L_wback
        """)
        a.label("L_end")
        if o.stamps:
            self.stamp()
            a("s_waitcnt vmcnt(0)")
            self.stamp()
        a(f"""
        s_lshl_b32 {sr(sT1)}, {sr(sW)}, 2
        s_add_u32 {sr(sT1)}, {sr(sT1)}, {QREG + 65536 - 16}
        v_mov_b32 {vr(x0)}, {sr(sBad)}
        v_mov_b32 {vr(x1)}, {sr(sT1)}
        ds_write_b32 {vr(x1)}, {vr(x0)}
        v_mov_b32 {vr(x1)}, {QREG + 65536 - 16}
        s_waitcnt lgkmcnt(0)
        s_barrier
        ds_read_b128 {vr(vT, 4)}, {vr(x1)}
        s_waitcnt lgkmcnt(0)
        v_or_b32 {vr(x0)}, {vr(vT)}, {vr(vT + 1)}
        v_or3_b32 {vr(x0)}, {vr(x0)}, {vr(vT + 2)}, {vr(vT + 3)}
        s_nop 1
        v_readfirstlane_b32 {sr(sBad)}, {vr(x0)}
        s_nop 3
        s_cmp_eq_u32 {sr(sBad)}, 0
        s_cbranch_scc1 L_exit
        s_waitcnt vmcnt(0)
        s_barrier
        s_and_b32 {sr(sT0)}, {sr(sBad)}, 1
        s_xor_b32 {sr(sHl)}, {sr(sT0)}, 1
        s_lshl_b32 {sr(sT0)}, 1, {sr(sHl)}
        s_andn2_b32 {sr(sBad)}, {sr(sBad)}, {sr(sT0)}
        s_mov_b32 {sr(sRedo)}, 1
        s_branch L_start
        """)
        a.label("L_exit")
        a("s_endpgm")

    def q_addr(self):
        return [f"v_xor_b32 {vr(vT + c)}, {c << 6}, {vr(vKg)}" for c in range(4)]

    def q_reads(self):
        L = []
        for u in range(4):
            for c in range(4):
                L.append(f"ds_read_b128 {vr(vQ + 16 * u + 4 * c, 4)}, {vr(vT + c)}" + (f" offset:{1024 * u}" if u else ""))
        return L

    def allreduce(self, op, reg, tmp):
        self.a(f"""
        v_mov_b32 {vr(tmp)}, {vr(reg)}
        s_nop 1
        v_permlane16_swap_b32 {vr(reg)}, {vr(tmp)}
        {op} {vr(reg)}, {vr(reg)}, {vr(tmp)}
        v_mov_b32 {vr(tmp)}, {vr(reg)}
        s_nop 1
        v_permlane32_swap_b32 {vr(reg)}, {vr(tmp)}
        {op} {vr(reg)}, {vr(reg)}, {vr(tmp)}
        """)

    def allreduce5(self, op, base, tmp):
        a = self.a
        for sw in ("v_permlane16_swap_b32", "v_permlane32_swap_b32"):
            for u in range(5):
                a(f"v_mov_b32 {vr(tmp + u)}, {vr(base + u)}")
            a("s_nop 0")
            for u in range(5):
                a(f"{sw} {vr(base + u)}, {vr(tmp + u)}")
            for u in range(5):
                a(f"{op} {vr(base + u)}, {vr(base + u)}, {vr(tmp + u)}")

    def epilogue(self):
        a = self.a
        o = self.o
        inv = vNM
        cv = vS
        rb = vS + 32
        st = {0: "", 1: " nt", 2: " sc1", 3: " sc0 sc1", 4: " sc1 nt"}[o.stmode]
        a(f"""
        s_lshl_b32 {sr(sT0)}, s2, 1
        s_add_u32 {sr(sT0)}, {sr(sT0)}, {sr(sPl)}
        s_mul_i32 {sr(sT0)}, {sr(sT0)}, {QBYTES}
        s_add_u32 {sr(sO)}, {sr(sOUT)}, {sr(sT0)}
        s_addc_u32 {sr(sO + 1)}, {sr(sOUT + 1)}, 0
        s_lshl_b32 {sr(sEo)}, {sr(sW)}, 14
        s_add_u32 {sr(sEo + 1)}, {sr(sEo)}, 4096
        s_add_u32 {sr(sEo + 2)}, {sr(sEo)}, 8192
        s_add_u32 {sr(sEo + 3)}, {sr(sEo)}, 12288
        """)
        self.allreduce5("v_add_f32", vL, vM)
        for u in range(5):
            a(f"v_rcp_f32 {vr(inv + 2 * u)}, {vr(vL + u)}")
        a(f"v_cmp_ngt_f32 {sr(sT2, 2)}, {sr(sLim)}, {vr(vL)}")
        for u in range(1, 5):
            a(f"v_cmp_ngt_f32 vcc, {sr(sLim)}, {vr(vL + u)}")
            a(f"s_or_b64 {sr(sT2, 2)}, {sr(sT2, 2)}, vcc")
        a(f"""
        s_cmp_lg_u64 {sr(sT2, 2)}, 0
        s_cselect_b32 {sr(sT0)}, 1, 0
        s_lshl_b32 {sr(sT0)}, {sr(sT0)}, {sr(sPl)}
        s_cmp_eq_u32 {sr(sRedo)}, 0
        s_cselect_b32 {sr(sT0)}, {sr(sT0)}, 0
        s_or_b32 {sr(sBad)}, {sr(sBad)}, {sr(sT0)}
        s_add_u32 {sr(sT1)}, {sr(sW4096)}, 65536
        """)

        def stores(u):
            L = []
            for i in range(4):
                if u < 4:
                    off = f" offset:{1024 * u}" if u else ""
                    so = sEo + i
                else:
                    off = f" offset:{1024 * i}" if i else ""
                    so = sT1
                L.append(f"buffer_store_dwordx4 {vr(rb + 4 * i, 4)}, {vr(vLane16)}, {sr(sO, 4)}, {sr(so)} offen{off}{st}")
            return L

        for u in range(5):
            for h in range(2):
                tb = cv + 16 * h
                for r in range(16):
                    a(f"v_accvgpr_read_b32 {vr(tb + r)}, {ar(aO + 32 * u + 16 * h + r)}")
                if h == 0 and u > 0:
                    a("s_waitcnt lgkmcnt(0)")
                    for ln in stores(u - 1):
                        a(ln)
                    if u == 4:
                        a(f"""
                        s_cmp_eq_u32 {sr(sW)}, 3
                        s_cbranch_scc1 L_epidone
                        """)
                for r in range(8):
                    a(f"v_pk_mul_f32 {vr(tb + 2 * r, 2)}, {vr(tb + 2 * r, 2)}, {vr(inv + 2 * u, 2)} op_sel_hi:[1,0]")
                for r in range(8):
                    a(f"v_cvt_pk_bf16_f32 {vr(tb + r)}, {vr(tb + 2 * r)}, {vr(tb + 2 * r + 1)}")
                for d in range(4):
                    a(f"ds_write_b64 {vr(vEw)}, {vr(tb + 2 * d, 2)} offset:{32 * (4 * h + d)}")
            for i in range(4):
                a(f"ds_read_b128 {vr(rb + 4 * i, 4)}, {vr(vEr)} offset:{4 * EROW * i}")
        a("s_waitcnt lgkmcnt(0)")
        for ln in stores(4):
            a(ln)
        a.label("L_epidone")
        if o.nodma or o.nomfma or o.nosm or o.nobar:
            a(f"s_mov_b32 {sr(sBad)}, 0")

    def prologue(self):
        a = self.a
        x0, x1 = vX, vX + 1
        a(f"""
        s_cmp_eq_u32 {sr(sPrev)}, 0
        s_cselect_b32 {sr(sPl)}, {sr(sHl)}, 1
        s_or_b32 {sr(sT0)}, {sr(sPl)}, {sr(sRedo)}
        s_xor_b32 {sr(sNext)}, {sr(sT0)}, 1
        s_mul_i32 {sr(sQstop)}, {sr(sNext)}, 15
        s_mul_i32 {sr(sStop)}, {sr(sNext)}, 3
        s_add_u32 {sr(sStop)}, {sr(sStop)}, 13
        s_add_u32 {sr(sQS)}, {sr(sQS)}, {QBYTES}
        s_addc_u32 {sr(sQS + 1)}, {sr(sQS + 1)}, 0
        s_mov_b32 {sr(sJ)}, 0
        s_mov_b32 {sr(sQn)}, 1
        s_waitcnt lgkmcnt(0)
        """)
        tq = vS

        def scale(d0, d1):
            for d in range(d0, d1, 2):
                t0 = tq + 4 * ((d >> 1) & 3)
                for u in range(2):
                    a(f"v_lshlrev_b32 {vr(t0 + 2 * u)}, 16, {vr(vQ + d + u)}")
                    a(f"v_and_b32 {vr(t0 + 2 * u + 1)}, {sr(sMask)}, {vr(vQ + d + u)}")
                for u in range(2):
                    a(f"v_pk_mul_f32 {vr(t0 + 2 * u, 2)}, {vr(t0 + 2 * u, 2)}, {sr(sC, 2)}")
                for u in range(2):
                    a(f"v_cvt_pk_bf16_f32 {vr(vQ + d + u)}, {vr(t0 + 2 * u)}, {vr(t0 + 2 * u + 1)}")

        scale(0, 64)
        a(f"""
        s_cmp_eq_u32 {sr(sPrev)}, 0
        s_cbranch_scc0 L_q4ok
        s_waitcnt vmcnt(16)
        """)
        a.label("L_q4ok")
        for d in range(16):
            a(f"v_accvgpr_read_b32 {vr(vQ + 64 + d)}, {ar(aQ4 + d)}")
        scale(64, 80)
        for u in range(5):
            a(f"v_mov_b32 {vr(vM + u)}, {NEGINF:#x}")
        z = vr(vZ, 4)
        zl = [f"{M32} {ar(16 * i, 16)}, {z}, {z}, 0" for i in range(14)]
        a(f"""
        s_mov_b32 {sr(sT3)}, 0
        s_cmp_eq_u32 {sr(sPrev)}, 0
        s_cbranch_scc0 L_maxgo
        s_waitcnt vmcnt(8)
        s_barrier
        """)
        a(f"""
        s_cmp_eq_u32 {sr(sNext)}, 0
        s_cbranch_scc1 L_nonext
        s_mov_b32 {sr(sQoff)}, 0
        s_mov_b32 m0, {sr(sQm0)}
        s_nop 0
        """)
        a(self.qdma())
        for ln in self.q4_loads():
            a(ln)
        a.label("L_nonext")
        self.issue_item()
        a(f"""
        s_lshl_b32 {sr(sT3)}, {sr(sRedo)}, 6
        s_lshl_b32 {sr(sT2)}, {sr(sPl)}, 18
        v_and_b32 {vr(x0)}, 15, v0
        v_lshlrev_b32 {vr(x0)}, 8, {vr(x0)}
        v_lshrrev_b32 {vr(x1)}, 4, v0
        v_lshl_or_b32 {vr(x0)}, {vr(x1)}, 4, {vr(x0)}
        """)
        a.label("L_max")
        a(f"""
        s_cmp_eq_u32 {sr(sT3)}, 0
        s_cbranch_scc1 L_maxlds
        """)
        for c in range(4):
            a(f"buffer_load_dwordx4 {vr(vK + 4 * c, 4)}, {vr(x0)}, {sr(sA, 4)}, {sr(sT2)} offen offset:{64 * c}")
        a(f"""
        s_add_u32 {sr(sT2)}, {sr(sT2)}, 4096
        s_waitcnt vmcnt(0)
        s_branch L_maxgo
        """)
        a.label("L_maxlds")
        for x in range(16):
            a(k_read(x))
        a("s_waitcnt lgkmcnt(12)")
        a.label("L_maxgo")
        mb = vS + 16
        for u in range(5):
            for c in range(4):
                a(qk_mfma(u, mb + 4 * u, c, "0"))
        a(zl[0])
        a("s_nop 6")
        for u in range(5):
            b = mb + 4 * u
            a(f"v_max3_f32 {vr(vM + u)}, {vr(vM + u)}, {vr(b)}, {vr(b + 1)}")
            a(f"v_max3_f32 {vr(vM + u)}, {vr(vM + u)}, {vr(b + 2)}, {vr(b + 3)}")
            if u == 2:
                a(zl[1])
        a(f"""
        s_sub_u32 {sr(sT3)}, {sr(sT3)}, 1
        s_cbranch_scc0 L_max
        """)
        sub = Asm()
        self.a = sub
        self.allreduce5("v_max_f32", vM, vS)
        self.a = a
        rest = list(sub.lines)
        rest += [f"s_cmp_eq_u32 {sr(sW)}, 3", f"s_cselect_b32 {sr(sT0)}, 0x7f800000, 0",
                 f"v_add_f32 {vr(vM + 4)}, {sr(sT0)}, {vr(vM + 4)}"]
        for u in range(5):
            for r in range(4):
                rest.append(f"v_sub_f32 {vr(vNM + 4 * u + r)}, 0, {vr(vM + u)}")
            rest.append(f"v_mov_b32 {vr(vL + u)}, 0")
        for r in (0, 1, 2, 3, 8, 9, 10, 11):
            rest.append(f"v_mov_b32 {vr(vS + 32 + r)}, 0")
        k = 2
        for i, ln in enumerate(rest):
            if i % 6 == 0 and k < 14:
                a(zl[k])
                k += 1
            a(ln)
        for ln in zl[k:]:
            a(ln)
        a("s_waitcnt lgkmcnt(0)")
        for x in range(8):
            a(qk_mfma(0, vS + 4 * (x >> 2), x, vr(vNM, 4)))
        a("s_nop 3")
        for e in range((self.o.adel - 1) // 2):
            a(f"v_exp_f32 {vr(vS + e)}, {vr(vS + e)}")

    def text(self):
        return (HEADER + f""".amdgcn_target "amdgcn-amd-amdhsa--gfx950"
.text
.globl {NAME}_kernel
.p2align 8
.type {NAME}_kernel,@function
{NAME}_kernel:
""" + self.a.text() + f""".section .rodata,"a"
.p2align 6
.amdhsa_kernel {NAME}_kernel
  .amdhsa_next_free_vgpr 512
  .amdhsa_next_free_sgpr {NSGPR}
  .amdhsa_accum_offset 256
  .amdhsa_group_segment_fixed_size 0
  .amdhsa_kernarg_size 48
  .amdhsa_user_sgpr_count 2
  .amdhsa_user_sgpr_kernarg_segment_ptr 1
  .amdhsa_system_sgpr_workgroup_id_x 1
.end_amdhsa_kernel
""")


_REG = re.compile(r"\b([va])(?:(\d+)|\[(\d+):(\d+)\])")


def regs(op):
    m = _REG.fullmatch(op.strip())
    if not m:
        return set()
    lo = int(m.group(2) or m.group(3))
    hi = int(m.group(2) or m.group(4))
    return {(m.group(1), i) for i in range(lo, hi + 1)}


def check_scc(body):
    last = None
    for ln in body:
        mn = ln.split(" ")[0]
        if mn.startswith(("s_cselect", "s_cbranch_scc")):
            assert last is not None and last.startswith("s_cmp"), (last, ln)
        if mn.startswith(("s_cmp", "s_add", "s_sub", "s_and", "s_or", "s_xor", "s_lsh", "s_mul_hi")):
            last = mn


def check_hazards(body, cyclic=True):
    ins = [ln for ln in body if not ln.endswith(":")]
    seq = ins + ins if cyclic else ins
    info = []
    for ln in seq:
        mn, _, rest = ln.partition(" ")
        ops = [x.strip().split(" ")[0] for x in rest.split(",")] if rest else []
        info.append((mn, ops, ln))

    def states(i, j):
        n = 0
        for k in range(i + 1, j):
            mn, ops, _ = info[k]
            n += int(ops[0]) + 1 if mn == "s_nop" else 1
        return n

    N = len(seq)
    for i, (mn, ops, ln) in enumerate(info[: len(ins)]):
        if mn.startswith("v_mfma"):
            big = "32x32" in mn
            dAB, dC, dV, dW = (12, 10, 12, 7) if big else (8, 6, 8, 3)
            d = regs(ops[0])
            c = regs(ops[3])
            for j in range(i + 1, min(N, i + 20)):
                mn2, ops2, ln2 = info[j]
                if mn2.startswith("v_mfma"):
                    if (regs(ops2[1]) | regs(ops2[2])) & d and states(i, j) < dAB:
                        raise SystemExit(f"hazard mfma D->AB: {ln} -> {ln2}")
                    c2 = regs(ops2[3])
                    if c2 & d and c2 != d and states(i, j) < dC:
                        raise SystemExit(f"hazard mfma D->C overlap: {ln} -> {ln2}")
                elif mn2.startswith(("v_", "ds_", "buffer_")):
                    touched = set()
                    for o_ in ops2:
                        touched |= regs(o_)
                    if touched & d and states(i, j) < dV:
                        raise SystemExit(f"hazard mfma D->valu ({states(i, j)}): {ln} -> {ln2}")
                    if mn2.startswith("v_") and regs(ops2[0]) & c and states(i, j) < dW:
                        raise SystemExit(f"hazard mfma C war: {ln} -> {ln2}")
        elif mn.startswith("v_"):
            d = regs(ops[0])
            if "permlane" in mn:
                d |= regs(ops[1])
            for j in range(i + 1, min(N, i + 4)):
                mn2, ops2, ln2 = info[j]
                if mn2.startswith("v_mfma"):
                    if (regs(ops2[1]) | regs(ops2[2]) | regs(ops2[3])) & d and states(i, j) < 2:
                        raise SystemExit(f"hazard valu->mfma: {ln} -> {ln2}")
                elif "permlane" in mn2 and (regs(ops2[0]) | regs(ops2[1])) & d and states(i, j) < 2:
                    raise SystemExit(f"hazard valu->permlane: {ln} -> {ln2}")
                elif mn in ("v_exp_f32", "v_rcp_f32") and mn2.startswith("v_") and states(i, j) < 1:
                    src = set()
                    for o_ in ops2[1:]:
                        src |= regs(o_)
                    if src & d:
                        raise SystemExit(f"hazard trans->valu: {ln} -> {ln2}")
        elif mn.startswith("buffer_store_dwordx4"):
            d = regs(ops[0])
            for j in range(i + 1, min(N, i + 3)):
                mn2, ops2, ln2 = info[j]
                if mn2.startswith(("v_", "ds_read")) and regs(ops2[0]) & d and states(i, j) < 2:
                    raise SystemExit(f"hazard store data war: {ln} -> {ln2}")
        elif mn.startswith("s_") and ops and ops[0] == "m0":
            if i + 1 < N and info[i + 1][0].startswith("buffer_"):
                raise SystemExit(f"hazard m0: {ln}")


def ilist(s):
    return [int(x) for x in s.split(",")]


def main():
    p = argparse.ArgumentParser()
    p.add_argument("-o", default=f"cdna_kernels/{NAME}.s")
    p.add_argument("--nt", type=int, default=1)
    p.add_argument("--stmode", type=int, default=4)
    p.add_argument("--vslots", type=ilist, default=[s for s in range(40) if s % 5 != 4 or s % 4 == 1][:32])
    p.add_argument("--kslots", type=ilist, default=[113, 115, 117, 119, 121, 123, 125, 127, 129, 131, 133, 135, 137, 141, 145, 149])
    p.add_argument("--aslots", type=ilist, default=[153, 157, 41, 45, 57, 65, 73, 81, 89, 97, 105, 111])
    p.add_argument("--dmapos", type=ilist, default=[53, 61, 69, 77, 85, 93, 101, 109])
    p.add_argument("--barslot", type=int, default=48)
    p.add_argument("--wstep", type=int, default=1)
    p.add_argument("--lat", type=int, default=7)
    p.add_argument("--vmw", type=int, default=8)
    p.add_argument("--qslot", type=int, default=49)
    p.add_argument("--adel", type=int, default=1)
    p.add_argument("--nodma", type=int, default=0)
    p.add_argument("--nobar", type=int, default=0)
    p.add_argument("--nomfma", type=int, default=0)
    p.add_argument("--nosm", type=int, default=0)
    p.add_argument("--stamps", type=int, default=0)
    o = p.parse_args()
    g = Gen(o)
    g.gen()
    if not (o.nomfma or o.nosm):
        check_hazards(g.a.lines, cyclic=False)
    open(o.o, "w").write(g.text())


if __name__ == "__main__":
    main()
```

```python
import argparse
import re
import struct

NAME = "standalone__mha_softmax__near_ridge"

HEADER = """; Kernarg layout for this problem (48 bytes, ptrs only, base s[0:1]):
; @launch grid=(256,1,1) block=(256,1,1) lds=163840
"""

QBYTES = 304 * 256
TILE = 16384
VREG = 3 * TILE
QREG = 6 * TILE


def f2u(x):
    return struct.unpack("<I", struct.pack("<f", x))[0]


CSCALE = f2u((128.0 ** -0.5) * 1.4426950408889634)
LIMIT = f2u(2.0 ** 40)
NEGINF = 0xFF800000

sQ, sK, sV, sOUT = 4, 6, 8, 10
sA, sB, sO, sQS = 12, 16, 20, 24
sOff, sQoff, sG, sStop = 28, 29, 30, 31
sRot = 34
sQstop, sSize = 32, 33
sW4096, sJ = 36, 37
sMask = 39
sEo = 40
sRelax, sBad, sRedo = 44, 45, 46
sW, sNext, sPrev = 47, 48, 49
sC = 50
sT0, sT1, sT2, sT3 = 54, 55, 56, 57
sQn = 58
sLim = 62
sHl = 63
sPl = 64
sDbg = 68
sTS = 72
NSGPR = 80

vDma = 1
vKA = 2
vVA = 6
vL = 14
vM = 19
vKg, vQ4, vEw, vEr, vLane16 = 24, 25, 26, 27, 28
vX = 29
vQ = 32
vNM = 112
vZ = 132
vS = 136
vK = 184
vD4 = 248
vST = 252
aO = 0
aV = 160
aQ4 = 224

M16 = "v_mfma_f32_16x16x32_bf16"
M32 = "v_mfma_f32_32x32x16_bf16"
EROW = 272
UBS = {5: [0, 1, 0, 1, 2], 4: [0, 1, 0, 2]}


class Asm:
    def __init__(self):
        self.lines = []

    def __call__(self, s):
        if isinstance(s, list):
            for x in s:
                self(x)
            return
        for ln in s.strip("\n").split("\n"):
            ln = ln.strip()
            if ln:
                self.lines.append(ln)

    def label(self, n):
        self.lines.append(n + ":")

    def text(self):
        out = []
        for ln in self.lines:
            out.append(ln if ln.endswith(":") or ln.startswith(".") else "    " + ln)
        return "\n".join(out) + "\n"


def vr(b, n=1):
    return f"v{b}" if n == 1 else f"v[{b}:{b + n - 1}]"


def ar(b, n=1):
    return f"a{b}" if n == 1 else f"a[{b}:{b + n - 1}]"


def sr(b, n=1):
    return f"s{b}" if n == 1 else f"s[{b}:{b + n - 1}]"


def qk_mfma(u, dst, x, cinit):
    c = x & 3
    d = vr(dst, 4)
    return f"{M16} {d}, {vr(vK + 4 * x, 4)}, {vr(vQ + 16 * u + 4 * c, 4)}, {d if c else cinit}"


def pv_mfma(u, buf, f):
    dt, t = f >> 1, f & 1
    d = ar(aO + 32 * u + 4 * dt, 4)
    return f"{M16} {d}, {ar(aV + 4 * f, 4)}, {vr(vS + 16 * buf + 8 * t, 4)}, {d}"


def k_read(x, slot):
    off = TILE * slot + 1024 * (x >> 2)
    return f"ds_read_b128 {vr(vK + 4 * x, 4)}, {vr(vKA + (x & 3))}" + (f" offset:{off}" if off else "")


def v_read(k, slot):
    f, jj = k >> 1, k & 1
    dt, t = f >> 1, f & 1
    off = TILE * slot + 1024 * (2 * t + jj)
    return f"ds_read_b64_tr_b16 {ar(aV + 4 * f + 2 * jj, 2)}, {vr(vVA + dt)}" + (f" offset:{off}" if off else "")


class Gen:
    def __init__(self, opt):
        self.o = opt
        self.a = Asm()
        self.nt = {0: "", 1: " nt"}[opt.nt]

    def dma(self, srd, voff, soff, i):
        o = f" offset:{1024 * i}" if i else ""
        return f"buffer_load_dwordx4 {vr(voff)}, {sr(srd, 4)}, {sr(soff)} offen{o}{self.nt} lds"

    def tile_groups(self, slot):
        G = []
        for half in (0, 1):
            for w in range(4):
                m0 = half * VREG + slot * TILE + 4096 * w
                G.append((f"s_mov_b32 m0, {m0}", [self.dma(sA if half == 0 else sB, vD4 + w, sOff, i) for i in range(4)]))
        return G

    def loader_tile(self, slot):
        a = self.a
        for m0, ds in self.tile_groups(slot):
            a(m0)
            a("s_nop 0")
            a(ds)
        a(self.tile_advance())

    def tile_off(self):
        return [f"s_add_u32 {sr(sOff)}, {sr(sG)}, {sr(sRot)}",
                f"s_and_b32 {sr(sOff)}, {sr(sOff)}, 15",
                f"s_and_b32 {sr(sT1)}, {sr(sG)}, 16",
                f"s_or_b32 {sr(sOff)}, {sr(sOff)}, {sr(sT1)}",
                f"s_lshl_b32 {sr(sOff)}, {sr(sOff)}, 14"]

    def tile_advance(self):
        return [f"s_add_u32 {sr(sG)}, {sr(sG)}, 1"] + self.tile_off()

    def q4_loads(self):
        return [f"buffer_load_dwordx4 {ar(aQ4 + 4 * c, 4)}, {vr(vQ4)}, {sr(sQS, 4)}, 0 offen offset:{64 * c}{self.nt}" for c in range(4)]

    def stamp_lines(self):
        return [f"s_memtime {sr(sTS, 2)}", f"s_memrealtime {sr(sTS + 2, 2)}", "s_waitcnt lgkmcnt(0)",
                f"v_mov_b32 {vr(vST)}, {sr(sTS)}", f"v_mov_b32 {vr(vST + 1)}, {sr(sTS + 2)}",
                f"buffer_store_dwordx2 {vr(vST, 2)}, {vr(vST + 2)}, {sr(sDbg, 4)}, {sr(sTS + 4)} offen",
                f"s_add_u32 {sr(sTS + 4)}, {sr(sTS + 4)}, 8"]

    def stamp(self):
        if self.o.stamps:
            self.a(self.stamp_lines())

    def schedule(self, NU, vs, ks, fat):
        o = self.o
        N = 32 * NU
        START = N - 8
        cap = [2] * N
        for s in vs + ks:
            cap[s] -= 1
        for s in fat:
            cap[s] += 1
        val = [[] for _ in range(N)]
        ops_exp = [(n, e) for n in range(NU) for e in range(16)]
        small = []
        ie = 0
        for t in range(N):
            s = (START + t) % N
            c = cap[s]
            ready = [x for x in small if x[0] <= t]
            can_exp = False
            if ie < len(ops_exp):
                n, e = ops_exp[ie]
                avail = 32 * n - 16 + 4 * (e >> 2) + 3 + 8 + o.elag
                can_exp = t >= avail
            while c > 0:
                if c >= 2 and can_exp and (len(ready) < 2 or c >= 3):
                    val[s].append(("exp", n, e))
                    small.append((t + 1, "add", n, e))
                    if e & 1:
                        small.append((t + 1, "cvt", n, e))
                    ie += 1
                    c -= 2
                    can_exp = False
                elif ready:
                    x = ready.pop(0)
                    small.remove(x)
                    val[s].append(x[1:])
                    if x[1] == "cvt":
                        dl = 32 * (x[2] + 1) + 8 - 2
                        if t > dl:
                            self.fail_t = dl
                            return None
                    c -= 1
                else:
                    break
        if ie < len(ops_exp) or small:
            self.fail_t = N - 1
            return None
        return val

    def loop_third(self, NU, slot, tag):
        o = self.o
        N = 32 * NU
        START = N - 8
        UB = UBS[NU]
        loader = NU == 4
        mf = []
        for n in range(NU):
            p = (n - 1) % NU
            q = (n + 1) % NU
            for f in range(16):
                mf.append(pv_mfma(p, UB[p], f))
            for x in range(16):
                mf.append(qk_mfma(q, vS + 16 * UB[q] + 4 * (x >> 2), x, vr(vNM + 4 * q, 4)))
        sal = [[] for _ in range(N)]
        mem = [[] for _ in range(N)]
        post = [[] for _ in range(N)]
        need = {}
        k0 = N - 48
        if loader:
            vs = [s for s in range(40) if s % 5 != 4 or s % 4 == 1][:32]
            ks = [k0 + 1 + 2 * x for x in range(16)]
            sched = [[] for _ in range(N)]
            for n in range(NU):
                for e in range(16):
                    s = (32 * n - 8 + 2 * e) % N
                    sched[s].append(("exp", n, e))
                    sched[s + 1].append(("add", n, e))
                    if e & 1:
                        sched[s + 1].append(("cvt", n, e))
        else:
            vs, ks = o.vslots, o.kslots
            sched = self.schedule(NU, vs, ks, o.fat)
            assert sched is not None, "schedule failed"
        val = [[] for _ in range(N)]
        for s in range(N):
            for kind, n, e in sorted(sched[s], key=lambda x: x[0] == "exp"):
                b = vS + 16 * UB[n]
                if kind == "exp":
                    val[s].append(f"v_exp_f32 {vr(b + e)}, {vr(b + e)}")
                elif kind == "add":
                    val[s].append(f"v_add_f32 {vr(vL + n)}, {vr(vL + n)}, {vr(b + e)}")
                else:
                    k = e >> 1
                    val[s].append(f"v_cvt_pk_bf16_f32 {vr(b + 8 * (k >> 2) + (k & 3))}, {vr(b + e - 1)}, {vr(b + e)}")
        assert len(vs) == 32 and len(ks) == 16
        for k, s in enumerate(vs):
            assert s >= (k >> 1)
            mem[s].append(v_read(k, slot))
        for f in range(16):
            need[32 + f] = ("V", 2 * f + 1)
        for x, s in enumerate(ks):
            assert k0 + x <= s < START
            mem[s].append(k_read(x, (slot + 1) % 3))
        for x in range(16):
            need[k0 + 32 + x] = ("K", x)
        bs = o.barslot
        assert bs > max(vs) + 6
        if loader:
            for i, ln in enumerate([f"s_lshr_b32 {sr(sT0)}, {sr(sQn)}, 2",
                                    f"s_mul_i32 {sr(sT0)}, {sr(sT0)}, 12288",
                                    f"s_lshl_b32 {sr(sQoff)}, {sr(sQn)}, 10",
                                    f"s_add_u32 {sr(sQoff)}, {sr(sQoff)}, {sr(sT0)}",
                                    f"s_add_u32 {sr(sQn)}, {sr(sQn)}, 1",
                                    f"s_cmp_lt_u32 {sr(sJ)}, {sr(sStop)}",
                                    f"s_cselect_b32 {sr(sA + 2)}, {sr(sSize)}, 0",
                                    f"s_mov_b32 {sr(sB + 2)}, {sr(sA + 2)}"]):
                sal[10 + i].append(ln)
            sal[bs - 1] += [f"s_cmp_lt_u32 {sr(sJ)}, {sr(sRelax)}", "s_waitcnt vmcnt(48) lgkmcnt(0)",
                            f"s_cbranch_scc1 L_rx{tag}", "s_waitcnt vmcnt(32)", f"L_rx{tag}:"]
            sal[bs].append("s_barrier")
            sal[bs + 1] += [f"s_cmp_ge_u32 {sr(sJ)}, {sr(sQstop)}", f"s_cbranch_scc1 L_noq{tag}"]
            for w in range(4):
                sal[bs + 1] += [f"s_add_u32 m0, {sr(sQoff)}, {QREG + 4096 * w}", "s_nop 0", self.dma(sQS, vD4 + w, sQoff, 0)]
            sal[bs + 1].append(f"L_noq{tag}:")
            s = bs + 3
            for m0, ds in self.tile_groups(slot):
                sal[s - 1].append(m0)
                for d in ds:
                    mem[s].insert(0, d)
                    s += o.dstep
            assert s - o.dstep < START - 4
            sal[START - 3].append(f"s_add_u32 {sr(sG)}, {sr(sG)}, 1")
            for i, ln in enumerate(self.tile_off()):
                sal[20 + i].append(ln)
        else:
            sal[bs - 1].append("s_waitcnt lgkmcnt(0)")
            sal[bs].append("s_barrier")
        sal[START - 4].append(f"s_add_u32 {sr(sJ)}, {sr(sJ)}, 1")
        sal[START - 2].append(f"s_cmp_eq_u32 {sr(sJ)}, 16")
        if slot < 2:
            post[START - 1].append(f"s_cbranch_scc1 L_tail{NU}")
        else:
            post[START - 1].append(f"s_branch L_loop{NU}_0")
        if o.stamps > 1:
            post[70] += self.stamp_lines()
        order = [(START + i) % N for i in range(N)]
        body = []
        for s in order:
            body.append(mf[s])
            nxt = (s + 1) % N
            if nxt in need:
                body.append(("WAIT", need[nxt]))
            body += sal[s] + mem[s] + val[s] + post[s]

        def tagof(x):
            if x.startswith("ds_read_b128"):
                return ("K", (int(x.split("[")[1].split(":")[0]) - vK) // 4)
            return ("V", (int(x.split("[")[1].split(":")[0]) - aV) // 2)

        out = []
        done = set()
        for i, ln in enumerate(body):
            if isinstance(ln, tuple):
                if ln[1] in done:
                    continue
                cnt = young = nmf = 0
                j = i
                while True:
                    j = (j - 1) % len(body)
                    x = body[j]
                    if isinstance(x, tuple):
                        continue
                    if x.startswith("v_mfma"):
                        nmf += 1
                    if x.startswith("ds_"):
                        if tagof(x) == ln[1]:
                            break
                        cnt += 1
                        if nmf <= o.lat:
                            young += 1
                cnt = min(cnt, young, 15)
                out.append(f"s_waitcnt lgkmcnt({cnt})")
                j = i
                k = 0
                for _ in range(len(body)):
                    j = (j - 1) % len(body)
                    x = body[j]
                    if isinstance(x, str) and x.startswith("ds_"):
                        k += 1
                        if k > cnt:
                            done.add(tagof(x))
            else:
                if ln.startswith("ds_"):
                    done.discard(tagof(ln))
                out.append(ln)
        if o.abl:
            for key in o.abl.split(","):
                out = [x for x in out if not x.startswith(key)]
        else:
            check_hazards(out)
        check_scc(out)
        return out, [mf[s] for s in range(16)]

    def gen(self):
        o = self.o
        a = self.a
        x0, x1, x2 = vX, vX + 1, vX + 2

        a("""
        s_cmp_ge_u32 s2, 256
        s_cbranch_scc1 L_exit
        s_load_dwordx8 s[4:11], s[0:1], 0
        """)
        if o.remap == 0:
            a("s_mov_b32 s3, s2")
        elif o.remap == 1:
            a(f"""
            s_lshr_b32 s3, s2, 3
            s_and_b32 {sr(sT0)}, s2, 7
            s_lshl_b32 {sr(sT0)}, {sr(sT0)}, 5
            s_or_b32 s3, s3, {sr(sT0)}
            """)
        elif o.remap == 2:
            a(f"""
            s_lshr_b32 {sr(sT0)}, s2, 3
            s_and_b32 {sr(sT0)}, {sr(sT0)}, 7
            s_xor_b32 s3, s2, {sr(sT0)}
            """)
        elif o.remap == 3:
            a("s_xor_b32 s3, s2, 1")
        if o.stamps:
            a(f"""
            s_load_dwordx2 {sr(sDbg, 2)}, s[0:1], 40
            s_mov_b32 {sr(sDbg + 2)}, 0x100000
            s_mov_b32 {sr(sDbg + 3)}, 0x00020000
            s_mov_b32 {sr(sTS + 4)}, 0
            v_lshrrev_b32 {vr(vST + 2)}, 6, v0
            v_lshl_add_u32 {vr(vST + 2)}, s2, 2, {vr(vST + 2)}
            v_lshlrev_b32 {vr(vST + 2)}, 9, {vr(vST + 2)}
            """)
            self.stamp()
        a(f"""
        v_lshrrev_b32 {vr(x0)}, 6, v0
        v_and_b32 v0, 63, v0
        v_lshrrev_b32 {vr(x1)}, 4, v0
        v_readfirstlane_b32 {sr(sW)}, {vr(x0)}
        v_and_b32 {vr(x2)}, 15, v0
        v_lshlrev_b32 {vr(x0)}, 1, {vr(x1)}
        v_xor_b32 {vr(x2)}, {vr(x2)}, {vr(x0)}
        v_lshlrev_b32 {vr(x2)}, 4, {vr(x2)}
        v_lshl_or_b32 {vr(vD4)}, {vr(x1)}, 8, {vr(x2)}
        s_lshl_b32 {sr(sW4096)}, {sr(sW)}, 12
        s_lshr_b32 {sr(sT0)}, {sr(sW)}, 1
        s_mul_i32 {sr(sT0)}, {sr(sT0)}, 0x90
        s_and_b32 {sr(sT1)}, {sr(sW)}, 1
        s_lshl_b32 {sr(sT1)}, {sr(sT1)}, 7
        s_xor_b32 {sr(sT0)}, {sr(sT0)}, {sr(sT1)}
        s_or_b32 {sr(sT0)}, {sr(sT0)}, {sr(sW4096)}
        v_xor_b32 {vr(vDma)}, {sr(sT0)}, {vr(vD4)}
        s_lshl_b32 {sr(sT0)}, s3, 19
        s_mov_b32 {sr(sSize)}, {2 * 262144}
        s_mov_b32 {sr(sA + 3)}, 0x00020000
        s_mov_b32 {sr(sB + 3)}, 0x00020000
        s_mov_b32 {sr(sO + 3)}, 0x00020000
        s_mov_b32 {sr(sQS + 3)}, 0x00020000
        s_mov_b32 {sr(sO + 2)}, {QBYTES}
        s_mov_b32 {sr(sQS + 2)}, {QBYTES}
        s_mov_b32 {sr(sBad)}, 0
        s_mov_b32 {sr(sRedo)}, 0
        s_mov_b32 {sr(sHl)}, 0
        s_mov_b32 {sr(sPl)}, 0
        v_and_b32 {vr(x0)}, 15, v0
        v_lshlrev_b32 {vr(x0)}, 8, {vr(x0)}
        v_lshl_or_b32 {vr(x0)}, {vr(x1)}, 4, {vr(x0)}
        s_add_u32 {sr(sT1)}, {sr(sW4096)}, 65536
        v_add_u32 {vr(vQ4)}, {sr(sT1)}, {vr(x0)}
        s_waitcnt lgkmcnt(0)
        s_add_u32 {sr(sA)}, {sr(sK)}, {sr(sT0)}
        s_addc_u32 {sr(sA + 1)}, {sr(sK + 1)}, 0
        s_add_u32 {sr(sB)}, {sr(sV)}, {sr(sT0)}
        s_addc_u32 {sr(sB + 1)}, {sr(sV + 1)}, 0
        s_mov_b32 {sr(sO)}, {sr(sOUT)}
        s_mov_b32 {sr(sO + 1)}, {sr(sOUT + 1)}
        """)
        a.label("L_start")
        a(f"""
        s_lshl_b32 {sr(sT0)}, s3, 1
        s_add_u32 {sr(sT0)}, {sr(sT0)}, {sr(sHl)}
        s_mul_i32 {sr(sT0)}, {sr(sT0)}, {QBYTES}
        s_add_u32 {sr(sQS)}, {sr(sQ)}, {sr(sT0)}
        s_addc_u32 {sr(sQS + 1)}, {sr(sQ + 1)}, 0
        s_mov_b32 {sr(sPrev)}, 0
        s_lshl_b32 {sr(sG)}, {sr(sHl)}, 4
        s_lshr_b32 {sr(sRot)}, s2, {o.rotsh}
        s_mul_i32 {sr(sRot)}, {sr(sRot)}, {o.rotmul}
        s_mov_b32 {sr(sA + 2)}, {sr(sSize)}
        s_mov_b32 {sr(sB + 2)}, {sr(sSize)}
        s_mov_b32 {sr(sRelax)}, 0
        """)
        a(self.tile_off())
        for u in range(4):
            a(f"s_mov_b32 {sr(sQoff)}, {TILE * u}")
            a(f"s_add_u32 m0, {sr(sW4096)}, {QREG + TILE * u}")
            a("s_nop 0")
            for i in range(4):
                a(self.dma(sQS, vDma, sQoff, i))
        a(self.q4_loads())
        for half in (0, 1):
            a(f"s_add_u32 m0, {sr(sW4096)}, {half * VREG}")
            a("s_nop 0")
            for i in range(4):
                a(self.dma(sA if half == 0 else sB, vDma, sOff, i))
        a(self.tile_advance())
        a(f"""
        v_xor_b32 {vr(vD4 + 1)}, {0x1080}, {vr(vD4)}
        v_xor_b32 {vr(vD4 + 2)}, {0x2090}, {vr(vD4)}
        v_xor_b32 {vr(vD4 + 3)}, {0x3010}, {vr(vD4)}
        """)
        a(f"""
        v_and_b32 {vr(x0)}, 3, v0
        v_bfe_u32 {vr(x1)}, v0, 2, 2
        v_lshl_or_b32 {vr(x2)}, {vr(x1)}, 4, {vr(x0)}
        v_lshlrev_b32 {vr(vKg)}, 8, {vr(x2)}
        v_and_b32 {vr(x0)}, 7, v0
        v_lshlrev_b32 {vr(x0)}, 1, {vr(x0)}
        v_bfe_u32 {vr(x1)}, v0, 3, 1
        v_mul_u32_u24 {vr(x1)}, 9, {vr(x1)}
        v_xor_b32 {vr(x0)}, {vr(x0)}, {vr(x1)}
        v_lshrrev_b32 {vr(x1)}, 4, v0
        v_xor_b32 {vr(x0)}, {vr(x0)}, {vr(x1)}
        v_lshl_or_b32 {vr(vKg)}, {vr(x0)}, 4, {vr(vKg)}
        """)
        a(f"""
        v_bfe_u32 {vr(x0)}, v0, 2, 2
        v_lshrrev_b32 {vr(x1)}, 4, v0
        v_lshl_or_b32 {vr(x2)}, {vr(x1)}, 4, {vr(x0)}
        v_lshlrev_b32 {vr(vVA)}, 8, {vr(x2)}
        v_bfe_u32 {vr(x0)}, v0, 2, 3
        v_lshlrev_b32 {vr(x0)}, 1, {vr(x0)}
        v_lshrrev_b32 {vr(x1)}, 5, v0
        v_mul_u32_u24 {vr(x1)}, 9, {vr(x1)}
        v_xor_b32 {vr(x0)}, {vr(x0)}, {vr(x1)}
        v_bfe_u32 {vr(x1)}, v0, 1, 1
        v_xor_b32 {vr(x0)}, {vr(x0)}, {vr(x1)}
        v_lshl_or_b32 {vr(vVA)}, {vr(x0)}, 4, {vr(vVA)}
        v_and_b32 {vr(x1)}, 1, v0
        v_lshl_or_b32 {vr(vVA)}, {vr(x1)}, 3, {vr(vVA)}
        v_add_u32 {vr(vVA)}, {VREG}, {vr(vVA)}
        """)
        a(f"""
        v_and_b32 {vr(x0)}, 15, v0
        v_lshrrev_b32 {vr(x1)}, 4, v0
        v_mul_u32_u24 {vr(vEw)}, {EROW}, {vr(x0)}
        v_lshl_add_u32 {vr(vEw)}, {vr(x1)}, 3, {vr(vEw)}
        v_mul_u32_u24 {vr(vEr)}, {EROW}, {vr(x1)}
        v_lshl_add_u32 {vr(vEr)}, {vr(x0)}, 4, {vr(vEr)}
        v_lshlrev_b32 {vr(vLane16)}, 4, v0
        s_mov_b32 {sr(sC)}, {CSCALE:#x}
        s_mov_b32 {sr(sC + 1)}, {CSCALE:#x}
        s_mov_b32 {sr(sLim)}, {LIMIT:#x}
        s_mov_b32 {sr(sMask)}, 0xffff0000
        s_lshl_b32 {sr(sT0)}, {sr(sW)}, 14
        s_add_u32 {sr(sT0)}, {sr(sT0)}, {QREG}
        v_add_u32 {vr(vEw)}, {sr(sT0)}, {vr(vEw)}
        v_add_u32 {vr(vEr)}, {sr(sT0)}, {vr(vEr)}
        """)
        for c in range(4):
            a(f"v_xor_b32 {vr(vKA + c)}, {c << 6}, {vr(vKg)}")
        for d in range(1, 8):
            a(f"v_xor_b32 {vr(vVA + d)}, {d << 5}, {vr(vVA)}")
        a(f"v_add_u32 {vr(vKg)}, {sr(sT0)}, {vr(vKg)}")
        for r in range(4):
            a(f"v_mov_b32 {vr(vZ + r)}, 0")
        a(self.q_addr())
        z = vr(vZ, 4)
        for i in range(10):
            a(f"{M32} {ar(16 * i, 16)}, {z}, {z}, 0")
        a("""
        s_waitcnt vmcnt(12)
        s_barrier
        """)
        self.stamp()
        a(self.q_reads())
        a(f"""
        s_cmp_lg_u32 {sr(sW)}, 3
        s_cbranch_scc1 L_pro
        """)
        self.loader_tile(1)
        a("s_branch L_pro")
        a.label("L_trans")
        self.stamp()
        self.epilogue()
        a(f"""
        s_mov_b32 {sr(sRelax)}, {0 if o.nost else 2}
        s_cmp_eq_u32 {sr(sNext)}, 0
        s_cbranch_scc1 L_end
        """)
        a.label("L_pro")
        self.stamp()
        self.prologue()
        self.stamp()
        a(f"""
        s_cmp_eq_u32 {sr(sW)}, 3
        s_cbranch_scc1 L_ent4
        s_cmp_eq_u32 {sr(sPrev)}, 0
        s_cbranch_scc0 L_loop5_1
        """)
        for NU in (5, 4):
            if NU == 4:
                a.label("L_ent4")
                a(f"""
                s_cmp_eq_u32 {sr(sPrev)}, 0
                s_cbranch_scc0 L_loop4_1
                """)
            a(".p2align 6")
            for slot in range(3):
                body, tail = self.loop_third(NU, slot, f"{NU}{slot}")
                a.label(f"L_loop{NU}_{slot}")
                a(body)
            a.label(f"L_tail{NU}")
            self.stamp()
            qa = self.q_addr()
            qr = self.q_reads()
            for i in range(16):
                a(tail[i])
                if i == 0:
                    a(qa)
                elif i <= 8:
                    a(qr[2 * i - 2: 2 * i])
            if NU == 5:
                a("s_waitcnt vmcnt(0)")
            a(f"""
            s_mov_b32 {sr(sPrev)}, 1
            s_branch L_trans
            """)
        a.label("L_end")
        if o.stamps:
            self.stamp()
            a("s_waitcnt vmcnt(0)")
            self.stamp()
        a(f"""
        s_lshl_b32 {sr(sT1)}, {sr(sW)}, 2
        s_add_u32 {sr(sT1)}, {sr(sT1)}, {QREG + 65536 - 16}
        v_mov_b32 {vr(x0)}, {sr(sBad)}
        v_mov_b32 {vr(x1)}, {sr(sT1)}
        ds_write_b32 {vr(x1)}, {vr(x0)}
        v_mov_b32 {vr(x1)}, {QREG + 65536 - 16}
        s_waitcnt lgkmcnt(0)
        s_barrier
        ds_read_b128 {vr(vK, 4)}, {vr(x1)}
        s_waitcnt lgkmcnt(0)
        v_or_b32 {vr(x0)}, {vr(vK)}, {vr(vK + 1)}
        v_or3_b32 {vr(x0)}, {vr(x0)}, {vr(vK + 2)}, {vr(vK + 3)}
        s_nop 1
        v_readfirstlane_b32 {sr(sBad)}, {vr(x0)}
        s_nop 3
        s_cmp_eq_u32 {sr(sBad)}, 0
        s_cbranch_scc1 L_exit
        s_waitcnt vmcnt(0)
        s_barrier
        s_and_b32 {sr(sT0)}, {sr(sBad)}, 1
        s_xor_b32 {sr(sHl)}, {sr(sT0)}, 1
        s_lshl_b32 {sr(sT0)}, 1, {sr(sHl)}
        s_andn2_b32 {sr(sBad)}, {sr(sBad)}, {sr(sT0)}
        s_mov_b32 {sr(sRedo)}, 1
        s_branch L_start
        """)
        a.label("L_exit")
        a("s_endpgm")

    def q_addr(self):
        return [f"v_xor_b32 {vr(vM + c)}, {c << 6}, {vr(vKg)}" for c in range(4)]

    def q_reads(self):
        L = []
        for u in range(4):
            for c in range(4):
                L.append(f"ds_read_b128 {vr(vQ + 16 * u + 4 * c, 4)}, {vr(vM + c)}" + (f" offset:{1024 * u}" if u else ""))
        return L

    def allreduce5(self, op, base, tmp):
        L = []
        for sw in ("v_permlane16_swap_b32", "v_permlane32_swap_b32"):
            for u in range(5):
                L.append(f"v_mov_b32 {vr(tmp + u)}, {vr(base + u)}")
            for u in range(5):
                L.append(f"{sw} {vr(base + u)}, {vr(tmp + u)}")
            for u in range(5):
                L.append(f"{op} {vr(base + u)}, {vr(base + u)}, {vr(tmp + u)}")
        return L

    def epilogue(self):
        a = self.a
        o = self.o
        inv = vNM
        cv = vS
        rb = vS + 16
        st = {0: "", 1: " nt", 2: " sc1", 3: " sc0 sc1", 4: " sc1 nt", 5: " sc0 sc1 nt"}[o.stmode]
        a(f"""
        s_lshl_b32 {sr(sT0)}, s3, 1
        s_add_u32 {sr(sT0)}, {sr(sT0)}, {sr(sPl)}
        s_mul_i32 {sr(sT0)}, {sr(sT0)}, {QBYTES}
        s_add_u32 {sr(sO)}, {sr(sOUT)}, {sr(sT0)}
        s_addc_u32 {sr(sO + 1)}, {sr(sOUT + 1)}, 0
        s_lshl_b32 {sr(sEo)}, {sr(sW)}, 14
        s_add_u32 {sr(sEo + 1)}, {sr(sEo)}, 4096
        s_add_u32 {sr(sEo + 2)}, {sr(sEo)}, 8192
        s_add_u32 {sr(sEo + 3)}, {sr(sEo)}, 12288
        """)
        a(self.allreduce5("v_add_f32", vL, vM))
        for u in range(5):
            a(f"v_rcp_f32 {vr(inv + 2 * u)}, {vr(vL + u)}")
        a(f"v_cmp_ngt_f32 {sr(sT2, 2)}, {sr(sLim)}, {vr(vL)}")
        for u in range(1, 5):
            a(f"v_cmp_ngt_f32 vcc, {sr(sLim)}, {vr(vL + u)}")
            a(f"s_or_b64 {sr(sT2, 2)}, {sr(sT2, 2)}, vcc")
        a(f"""
        s_cmp_lg_u64 {sr(sT2, 2)}, 0
        s_cselect_b32 {sr(sT0)}, 1, 0
        s_lshl_b32 {sr(sT0)}, {sr(sT0)}, {sr(sPl)}
        s_cmp_eq_u32 {sr(sRedo)}, 0
        s_cselect_b32 {sr(sT0)}, {sr(sT0)}, 0
        s_or_b32 {sr(sBad)}, {sr(sBad)}, {sr(sT0)}
        s_add_u32 {sr(sT1)}, {sr(sW4096)}, 65536
        """)
        if o.abl:
            a(f"s_mov_b32 {sr(sBad)}, 0")

        def store(u, i):
            if u < 4:
                off = f" offset:{1024 * u}" if u else ""
                so = sEo + i
            else:
                off = f" offset:{1024 * i}" if i else ""
                so = sT1
            if o.nost:
                return "s_nop 0"
            return f"buffer_store_dwordx4 {vr(rb + 16 * (u & 1) + 4 * i, 4)}, {vr(vLane16)}, {sr(sO, 4)}, {sr(so)} offen{off}{st}"

        z = vr(vZ, 4)
        for u in range(5):
            if u == 4:
                a(f"""
                s_cmp_eq_u32 {sr(sW)}, 3
                s_cbranch_scc1 L_epi3
                """)
            eb = (u & 1) * 16 * EROW
            for dt in range(8):
                tb = cv + 4 * (dt & 3)
                acc = aO + 32 * u + 4 * dt
                for r in range(4):
                    a(f"v_accvgpr_read_b32 {vr(tb + r)}, {ar(acc + r)}")
                for r in range(2):
                    a(f"v_pk_mul_f32 {vr(tb + 2 * r, 2)}, {vr(tb + 2 * r, 2)}, {vr(inv + 2 * u, 2)} op_sel_hi:[1,0]")
                for r in range(2):
                    a(f"v_cvt_pk_bf16_f32 {vr(tb + r)}, {vr(tb + 2 * r)}, {vr(tb + 2 * r + 1)}")
                a(f"{M16} {ar(acc, 4)}, {z}, {z}, 0")
                if u > 0 and dt == 3:
                    a("s_waitcnt lgkmcnt(3)")
                a(f"ds_write_b64 {vr(vEw)}, {vr(tb, 2)} offset:{eb + 32 * dt}")
                if u > 0 and dt >= 3 and dt < 7:
                    a(store(u - 1, dt - 3))
            for i in range(4):
                a(f"ds_read_b128 {vr(rb + 16 * (u & 1) + 4 * i, 4)}, {vr(vEr)} offset:{eb + 4 * EROW * i}")
        for i in range(4):
            a(f"s_waitcnt lgkmcnt({3 - i})")
            a(store(4, i))
        a("s_branch L_epidone")
        a.label("L_epi3")
        for i in range(4):
            a(f"s_waitcnt lgkmcnt({3 - i})")
            a(store(3, i))
        a.label("L_epidone")

    def prologue(self):
        a = self.a
        x0, x1 = vX, vX + 1
        a(f"""
        s_cmp_eq_u32 {sr(sPrev)}, 0
        s_cselect_b32 {sr(sPl)}, {sr(sHl)}, 1
        s_or_b32 {sr(sT0)}, {sr(sPl)}, {sr(sRedo)}
        s_xor_b32 {sr(sNext)}, {sr(sT0)}, 1
        s_mul_i32 {sr(sQstop)}, {sr(sNext)}, 15
        s_mul_i32 {sr(sStop)}, {sr(sNext)}, 3
        s_add_u32 {sr(sStop)}, {sr(sStop)}, 13
        s_add_u32 {sr(sQS)}, {sr(sQS)}, {QBYTES}
        s_addc_u32 {sr(sQS + 1)}, {sr(sQS + 1)}, 0
        s_mov_b32 {sr(sJ)}, 0
        s_mov_b32 {sr(sQn)}, 1
        s_waitcnt lgkmcnt(0)
        """)
        tq = vS

        def scale(d0, d1):
            for d in range(d0, d1, 2):
                t0 = tq + 4 * ((d >> 1) & 3)
                for u in range(2):
                    a(f"v_lshlrev_b32 {vr(t0 + 2 * u)}, 16, {vr(vQ + d + u)}")
                    a(f"v_and_b32 {vr(t0 + 2 * u + 1)}, {sr(sMask)}, {vr(vQ + d + u)}")
                for u in range(2):
                    a(f"v_pk_mul_f32 {vr(t0 + 2 * u, 2)}, {vr(t0 + 2 * u, 2)}, {sr(sC, 2)}")
                for u in range(2):
                    a(f"v_cvt_pk_bf16_f32 {vr(vQ + d + u)}, {vr(t0 + 2 * u)}, {vr(t0 + 2 * u + 1)}")

        scale(0, 64)
        a(f"""
        s_cmp_eq_u32 {sr(sW)}, 3
        s_cbranch_scc1 L_q4done
        s_cmp_eq_u32 {sr(sPrev)}, 0
        s_cbranch_scc0 L_q4ok
        s_waitcnt vmcnt(8)
        """)
        a.label("L_q4ok")
        for d in range(16):
            a(f"v_accvgpr_read_b32 {vr(vQ + 64 + d)}, {ar(aQ4 + d)}")
        scale(64, 80)
        a.label("L_q4done")
        for u in range(5):
            a(f"v_mov_b32 {vr(vM + u)}, {NEGINF:#x}")
        z = vr(vZ, 4)
        zl = [f"{M32} {ar(aV + 16 * i, 16)}, {z}, {z}, 0" for i in range(4)]
        a(f"""
        s_mov_b32 {sr(sT3)}, 0
        s_cmp_eq_u32 {sr(sPrev)}, 0
        s_cbranch_scc0 L_maxgo
        s_cmp_eq_u32 {sr(sW)}, 3
        s_waitcnt vmcnt(32)
        s_cbranch_scc1 L_t0w
        s_waitcnt vmcnt(0)
        """)
        a.label("L_t0w")
        a("s_barrier")
        a(f"""
        s_lshl_b32 {sr(sT3)}, {sr(sRedo)}, 6
        s_lshl_b32 {sr(sT2)}, {sr(sPl)}, 18
        v_and_b32 {vr(x0)}, 15, v0
        v_lshlrev_b32 {vr(x0)}, 8, {vr(x0)}
        v_lshrrev_b32 {vr(x1)}, 4, v0
        v_lshl_or_b32 {vr(x0)}, {vr(x1)}, 4, {vr(x0)}
        """)
        a.label("L_max")
        a(f"""
        s_cmp_eq_u32 {sr(sT3)}, 0
        s_cbranch_scc1 L_maxlds
        """)
        for c in range(4):
            a(f"buffer_load_dwordx4 {vr(vK + 4 * c, 4)}, {vr(x0)}, {sr(sA, 4)}, {sr(sT2)} offen offset:{64 * c}")
        a(f"""
        s_add_u32 {sr(sT2)}, {sr(sT2)}, 4096
        s_waitcnt vmcnt(0)
        s_branch L_maxgo
        """)
        a.label("L_maxlds")
        for x in range(16):
            a(k_read(x, 0))
        a("s_waitcnt lgkmcnt(12)")
        a.label("L_maxgo")
        mb = vS + 16
        for u in range(5):
            for c in range(4):
                a(qk_mfma(u, mb + 4 * u, c, "0"))
            if u >= 2:
                b = mb + 4 * (u - 2)
                a(f"v_max3_f32 {vr(vM + u - 2)}, {vr(vM + u - 2)}, {vr(b)}, {vr(b + 1)}")
                a(f"v_max3_f32 {vr(vM + u - 2)}, {vr(vM + u - 2)}, {vr(b + 2)}, {vr(b + 3)}")
        a(zl[0])
        a("s_nop 2")
        for u in (3, 4):
            b = mb + 4 * u
            a(f"v_max3_f32 {vr(vM + u)}, {vr(vM + u)}, {vr(b)}, {vr(b + 1)}")
            a(f"v_max3_f32 {vr(vM + u)}, {vr(vM + u)}, {vr(b + 2)}, {vr(b + 3)}")
        a(f"""
        s_sub_u32 {sr(sT3)}, {sr(sT3)}, 1
        s_cbranch_scc0 L_max
        """)
        rest = self.allreduce5("v_max_f32", vM, vS)
        k = 1
        for i, ln in enumerate(rest):
            if i % 8 == 0 and k < 4:
                a(zl[k])
                k += 1
            a(ln)
        for r in range(4):
            a(f"v_sub_f32 {vr(vNM + r)}, 0, {vr(vM)}")
        a("s_waitcnt lgkmcnt(0)")
        rest = []
        for u in range(1, 5):
            for r in range(4):
                rest.append(f"v_sub_f32 {vr(vNM + 4 * u + r)}, 0, {vr(vM + u)}")
        for u in range(5):
            rest.append(f"v_mov_b32 {vr(vL + u)}, 0")
        for r in (0, 1, 2, 3, 8, 9, 10, 11):
            rest.append(f"v_mov_b32 {vr(vS + 32 + r)}, 0")
        a(rest[:1])
        rest = rest[1:]
        for x in range(8):
            a(qk_mfma(0, vS + 4 * (x >> 2), x, vr(vNM, 4)))
            a(rest[4 * x: 4 * x + 4])
        a(f"""
        s_cmp_eq_u32 {sr(sPrev)}, 0
        s_cbranch_scc0 L_prodone
        s_cmp_eq_u32 {sr(sW)}, 3
        s_cbranch_scc1 L_pro3
        s_cmp_eq_u32 {sr(sNext)}, 0
        s_cbranch_scc1 L_prodone
        """)
        a(self.q4_loads())
        a("s_branch L_prodone")
        a.label("L_pro3")
        a(f"""
        s_cmp_eq_u32 {sr(sNext)}, 0
        s_cbranch_scc1 L_nonext
        s_mov_b32 {sr(sQoff)}, 0
        """)
        for w in range(4):
            a([f"s_mov_b32 m0, {QREG + 4096 * w}", "s_nop 0", self.dma(sQS, vD4 + w, sQoff, 0)])
        a.label("L_nonext")
        self.loader_tile(2)
        a.label("L_prodone")

    def text(self):
        return (HEADER + f""".amdgcn_target "amdgcn-amd-amdhsa--gfx950"
.text
.globl {NAME}_kernel
.p2align 8
.type {NAME}_kernel,@function
{NAME}_kernel:
""" + self.a.text() + f""".section .rodata,"a"
.p2align 6
.amdhsa_kernel {NAME}_kernel
  .amdhsa_next_free_vgpr 512
  .amdhsa_next_free_sgpr {NSGPR}
  .amdhsa_accum_offset 256
  .amdhsa_group_segment_fixed_size 0
  .amdhsa_kernarg_size 48
  .amdhsa_user_sgpr_count 2
  .amdhsa_user_sgpr_kernarg_segment_ptr 1
  .amdhsa_system_sgpr_workgroup_id_x 1
.end_amdhsa_kernel
""")


_REG = re.compile(r"\b([va])(?:(\d+)|\[(\d+):(\d+)\])")


def regs(op):
    m = _REG.fullmatch(op.strip())
    if not m:
        return set()
    lo = int(m.group(2) or m.group(3))
    hi = int(m.group(2) or m.group(4))
    return {(m.group(1), i) for i in range(lo, hi + 1)}


def check_scc(body):
    last = None
    for ln in body:
        mn = ln.split(" ")[0]
        if mn.startswith(("s_cselect", "s_cbranch_scc")):
            assert last is not None and last.startswith("s_cmp"), (last, ln)
        if mn.startswith(("s_cmp", "s_add", "s_sub", "s_and", "s_or", "s_xor", "s_lsh", "s_mul_hi")):
            last = mn


def check_hazards(body, cyclic=True):
    ins = [ln for ln in body if not ln.endswith(":")]
    seq = ins + ins if cyclic else ins
    info = []
    for ln in seq:
        mn, _, rest = ln.partition(" ")
        ops = [x.strip().split(" ")[0] for x in rest.split(",")] if rest else []
        info.append((mn, ops, ln))

    def states(i, j):
        n = 0
        for k in range(i + 1, j):
            mn, ops, _ = info[k]
            n += int(ops[0]) + 1 if mn == "s_nop" else 1
        return n

    N = len(seq)
    for i, (mn, ops, ln) in enumerate(info[: len(ins)]):
        if mn.startswith("v_mfma"):
            big = "32x32" in mn
            dAB, dC, dV, dW = (12, 10, 12, 7) if big else (8, 6, 8, 3)
            d = regs(ops[0])
            c = regs(ops[3])
            for j in range(i + 1, min(N, i + 20)):
                mn2, ops2, ln2 = info[j]
                if mn2.startswith("v_mfma"):
                    if (regs(ops2[1]) | regs(ops2[2])) & d and states(i, j) < dAB:
                        raise SystemExit(f"hazard mfma D->AB: {ln} -> {ln2}")
                    c2 = regs(ops2[3])
                    if c2 & d and c2 != d and states(i, j) < dC:
                        raise SystemExit(f"hazard mfma D->C overlap: {ln} -> {ln2}")
                elif mn2.startswith(("v_", "ds_", "buffer_")):
                    touched = set()
                    for o_ in ops2:
                        touched |= regs(o_)
                    if touched & d and states(i, j) < dV:
                        raise SystemExit(f"hazard mfma D->valu ({states(i, j)}): {ln} -> {ln2}")
                    if mn2.startswith("v_") and regs(ops2[0]) & c and states(i, j) < dW:
                        raise SystemExit(f"hazard mfma C war: {ln} -> {ln2}")
        elif mn.startswith("v_"):
            d = regs(ops[0])
            if "permlane" in mn:
                d |= regs(ops[1])
            for j in range(i + 1, min(N, i + 4)):
                mn2, ops2, ln2 = info[j]
                if mn2.startswith("v_mfma"):
                    if (regs(ops2[1]) | regs(ops2[2]) | regs(ops2[3])) & d and states(i, j) < 2:
                        raise SystemExit(f"hazard valu->mfma: {ln} -> {ln2}")
                elif "permlane" in mn2 and (regs(ops2[0]) | regs(ops2[1])) & d and states(i, j) < 2:
                    raise SystemExit(f"hazard valu->permlane: {ln} -> {ln2}")
                elif mn in ("v_exp_f32", "v_rcp_f32") and mn2.startswith("v_") and states(i, j) < 1:
                    src = set()
                    for o_ in ops2[1:]:
                        src |= regs(o_)
                    if src & d:
                        raise SystemExit(f"hazard trans->valu: {ln} -> {ln2}")
        elif mn.startswith("buffer_store_dwordx4"):
            d = regs(ops[0])
            for j in range(i + 1, min(N, i + 3)):
                mn2, ops2, ln2 = info[j]
                if mn2.startswith(("v_", "ds_read")) and regs(ops2[0]) & d and states(i, j) < 2:
                    raise SystemExit(f"hazard store data war: {ln} -> {ln2}")
        elif mn.startswith("s_") and ops and ops[0] == "m0":
            if i + 1 < N and info[i + 1][0].startswith("buffer_"):
                raise SystemExit(f"hazard m0: {ln}")


def ilist(s):
    return [int(x) for x in s.split(",")]


def main():
    p = argparse.ArgumentParser()
    p.add_argument("-o", default=f"cdna_kernels/{NAME}.s")
    p.add_argument("--nt", type=int, default=1)
    p.add_argument("--stmode", type=int, default=4)
    p.add_argument("--vslots", type=ilist, default=[1, 1, 4, 4, 7, 7, 10, 10, 13, 13, 16, 16, 19, 19, 22, 22, 25, 25, 28, 28,
                                                    30, 30, 31, 31, 32, 32, 33, 33, 34, 34, 35, 35])
    p.add_argument("--kslots", type=ilist, default=[120, 120, 124, 124, 128, 128, 132, 132, 136, 136, 140, 140, 144, 144, 148, 148])
    p.add_argument("--fat", type=ilist, default=[])
    p.add_argument("--elag", type=int, default=4)
    p.add_argument("--barslot", type=int, default=48)
    p.add_argument("--dstep", type=int, default=2)
    p.add_argument("--lat", type=int, default=7)
    p.add_argument("--nost", type=int, default=0)
    p.add_argument("--remap", type=int, default=1)
    p.add_argument("--rotsh", type=int, default=0)
    p.add_argument("--rotmul", type=int, default=0)
    p.add_argument("--abl", default="")
    p.add_argument("--stamps", type=int, default=0)
    o = p.parse_args()
    g = Gen(o)
    if not o.fat:
        found = []
        busy = set(o.vslots) | set(o.kslots)
        while g.schedule(5, o.vslots, o.kslots, found) is None:
            ft = g.fail_t
            cand = [(152 + t) % 160 for t in range(max(1, ft - 27), ft)]
            cand = [c for c in cand if c not in busy and c not in found]
            best = max(cand, key=lambda c: min([abs(c - f) for f in found] + [9]) * 100 - cand.index(c))
            found.append(best)
            assert len(found) < 40
        o.fat = found
        print("fat slots:", found)
    g.gen()
    if not o.abl:
        check_hazards(g.a.lines, cyclic=False)
    open(o.o, "w").write(g.text())


if __name__ == "__main__":
    main()
```

```python
import argparse
import re
import struct

NAME = "standalone__mha_softmax__near_ridge"

HEADER = """; Kernarg layout for this problem (48 bytes, ptrs only, base s[0:1]):
; @launch grid=(256,1,1) block=(256,1,1) lds=163840
"""

QBYTES = 304 * 256
TILE = 16384
VREG = 3 * TILE
QREG = 6 * TILE


def f2u(x):
    return struct.unpack("<I", struct.pack("<f", x))[0]


CSCALE = f2u((128.0 ** -0.5) * 1.4426950408889634)
LIMIT = f2u(2.0 ** 40)
NEGINF = 0xFF800000

sQ, sK, sV, sOUT = 4, 6, 8, 10
sA, sB, sO, sQS = 12, 16, 20, 24
sOff, sQoff, sG, sStop = 28, 29, 30, 31
sRot = 34
sStaged = 35
sQstop, sSize = 32, 33
sW4096, sJ = 36, 37
sMask = 39
sEo = 40
sRelax, sBad, sRedo = 44, 45, 46
sW, sNext, sPrev = 47, 48, 49
sC = 50
sT0, sT1, sT2, sT3 = 54, 55, 56, 57
sQn = 58
sLim = 62
sHl = 63
sPl = 64
sDbg = 68
sTS = 72
NSGPR = 80

vDma = 1
vKA = 2
vVA = 6
vL = 14
vM = 19
vKg, vQ4, vEw, vEr, vLane16 = 24, 25, 26, 27, 28
vX = 29
vQ = 32
vNM = 112
vZ = 132
vS = 136
vK = 184
vD4 = 248
vST = 252
aO = 0
aV = 160
aQ4 = 224
aO4 = 240
vDr = vQ + 64
aDr = aO + 128

M16 = "v_mfma_f32_16x16x32_bf16"
M32 = "v_mfma_f32_32x32x16_bf16"
EROW = 272
UBS = {5: [0, 1, 0, 1, 2], 4: [0, 1, 0, 2]}


class Asm:
    def __init__(self):
        self.lines = []

    def __call__(self, s):
        if isinstance(s, list):
            for x in s:
                self(x)
            return
        for ln in s.strip("\n").split("\n"):
            ln = ln.strip()
            if ln:
                self.lines.append(ln)

    def label(self, n):
        self.lines.append(n + ":")

    def text(self):
        out = []
        for ln in self.lines:
            out.append(ln if ln.endswith(":") or ln.startswith(".") else "    " + ln)
        return "\n".join(out) + "\n"


def vr(b, n=1):
    return f"v{b}" if n == 1 else f"v[{b}:{b + n - 1}]"


def ar(b, n=1):
    return f"a{b}" if n == 1 else f"a[{b}:{b + n - 1}]"


def sr(b, n=1):
    return f"s{b}" if n == 1 else f"s[{b}:{b + n - 1}]"


def qk_mfma(u, dst, x, cinit):
    c = x & 3
    d = vr(dst, 4)
    return f"{M16} {d}, {vr(vK + 4 * x, 4)}, {vr(vQ + 16 * u + 4 * c, 4)}, {d if c else cinit}"


def pv_mfma(u, buf, f):
    dt, t = f >> 1, f & 1
    d = ar(aO + 32 * u + 4 * dt, 4)
    return f"{M16} {d}, {ar(aV + 4 * f, 4)}, {vr(vS + 16 * buf + 8 * t, 4)}, {d}"


def k_read(x, slot):
    off = TILE * slot + 1024 * (x >> 2)
    return f"ds_read_b128 {vr(vK + 4 * x, 4)}, {vr(vKA + (x & 3))}" + (f" offset:{off}" if off else "")


def v_read(k, slot):
    f, jj = k >> 1, k & 1
    dt, t = f >> 1, f & 1
    off = TILE * slot + 1024 * (2 * t + jj)
    return f"ds_read_b64_tr_b16 {ar(aV + 4 * f + 2 * jj, 2)}, {vr(vVA + dt)}" + (f" offset:{off}" if off else "")


class Gen:
    def __init__(self, opt):
        self.o = opt
        self.a = Asm()
        self.nt = {0: "", 1: " nt"}[opt.nt]
        self.st = {0: "", 1: " nt", 2: " sc1", 3: " sc0 sc1", 4: " sc1 nt", 5: " sc0 sc1 nt"}[opt.stmode]

    def dma(self, srd, voff, soff, i):
        o = f" offset:{1024 * i}" if i else ""
        return f"buffer_load_dwordx4 {vr(voff)}, {sr(srd, 4)}, {sr(soff)} offen{o}{self.nt} lds"

    def tile_groups(self, slot):
        G = []
        for half in (0, 1):
            for w in range(4):
                m0 = half * VREG + slot * TILE + 4096 * w
                G.append((f"s_mov_b32 m0, {m0}", [self.dma(sA if half == 0 else sB, vD4 + w, sOff, i) for i in range(4)]))
        return G

    def loader_tile(self, slot):
        a = self.a
        for m0, ds in self.tile_groups(slot):
            a(m0)
            a("s_nop 0")
            a(ds)
        a(self.tile_advance())

    def tile_off(self):
        return [f"s_add_u32 {sr(sOff)}, {sr(sG)}, {sr(sRot)}",
                f"s_and_b32 {sr(sOff)}, {sr(sOff)}, 15",
                f"s_and_b32 {sr(sT1)}, {sr(sG)}, 16",
                f"s_or_b32 {sr(sOff)}, {sr(sOff)}, {sr(sT1)}",
                f"s_lshl_b32 {sr(sOff)}, {sr(sOff)}, 14"]

    def tile_advance(self):
        return [f"s_add_u32 {sr(sG)}, {sr(sG)}, 1"] + self.tile_off()

    def q4_loads(self):
        return [f"buffer_load_dwordx4 {ar(aQ4 + 4 * c, 4)}, {vr(vQ4)}, {sr(sQS, 4)}, 0 offen offset:{64 * c}{self.nt}" for c in range(4)]

    def stamp_lines(self):
        return [f"s_memtime {sr(sTS, 2)}", f"s_memrealtime {sr(sTS + 2, 2)}", "s_waitcnt lgkmcnt(0)",
                f"v_mov_b32 {vr(vST)}, {sr(sTS)}", f"v_mov_b32 {vr(vST + 1)}, {sr(sTS + 2)}",
                f"buffer_store_dwordx2 {vr(vST, 2)}, {vr(vST + 2)}, {sr(sDbg, 4)}, {sr(sTS + 4)} offen",
                f"s_add_u32 {sr(sTS + 4)}, {sr(sTS + 4)}, 8"]

    def stamp(self):
        if self.o.stamps:
            self.a(self.stamp_lines())

    def schedule(self, NU, vs, ks, fat):
        o = self.o
        N = 32 * NU
        START = N - 8
        cap = [2] * N
        for s in vs + ks:
            cap[s] -= 1
        for s in fat:
            cap[s] += 1
        val = [[] for _ in range(N)]
        ops_exp = [(n, e) for n in range(NU) for e in range(16)]
        small = []
        ie = 0
        for t in range(N):
            s = (START + t) % N
            c = cap[s]
            ready = [x for x in small if x[0] <= t]
            can_exp = False
            if ie < len(ops_exp):
                n, e = ops_exp[ie]
                avail = 32 * n - 16 + 4 * (e >> 2) + 3 + 8 + o.elag
                can_exp = t >= avail
            while c > 0:
                if c >= 2 and can_exp and (len(ready) < 2 or c >= 3):
                    val[s].append(("exp", n, e))
                    small.append((t + 1, "add", n, e))
                    if e & 1:
                        small.append((t + 1, "cvt", n, e))
                    ie += 1
                    c -= 2
                    can_exp = False
                elif ready:
                    x = ready.pop(0)
                    small.remove(x)
                    val[s].append(x[1:])
                    if x[1] == "cvt":
                        dl = 32 * (x[2] + 1) + 8 - 2
                        if t > dl:
                            self.fail_t = dl
                            return None
                    c -= 1
                else:
                    break
        if ie < len(ops_exp) or small:
            self.fail_t = N - 1
            return None
        return val

    def loop_third(self, NU, slot, tag, drain=-1):
        o = self.o
        N = 32 * NU
        START = N - 8
        UB = UBS[NU]
        loader = NU == 4
        mf = []
        for n in range(NU):
            p = (n - 1) % NU
            q = (n + 1) % NU
            for f in range(16):
                mf.append(pv_mfma(p, UB[p], f))
            for x in range(16):
                mf.append(qk_mfma(q, vS + 16 * UB[q] + 4 * (x >> 2), x, vr(vNM + 4 * q, 4)))
        sal = [[] for _ in range(N)]
        mem = [[] for _ in range(N)]
        post = [[] for _ in range(N)]
        need = {}
        need2 = {}
        k0 = N - 48
        if loader:
            vs = [s for s in range(40) if s % 5 != 4 or s % 4 == 1][:32]
            ks = [k0 + 1 + 2 * x for x in range(16)]
            sched = [[] for _ in range(N)]
            for n in range(NU):
                for e in range(16):
                    s = (32 * n - 8 + 2 * e) % N
                    sched[s].append(("exp", n, e))
                    sched[s + 1].append(("add", n, e))
                    if e & 1:
                        sched[s + 1].append(("cvt", n, e))
        else:
            vs, ks = o.vslots, o.kslots
            sched = self.schedule(NU, vs, ks, o.fat)
            assert sched is not None, "schedule failed"
        val = [[] for _ in range(N)]
        for s in range(N):
            for kind, n, e in sorted(sched[s], key=lambda x: x[0] == "exp"):
                b = vS + 16 * UB[n]
                if kind == "exp":
                    val[s].append(f"v_exp_f32 {vr(b + e)}, {vr(b + e)}")
                elif kind == "add":
                    val[s].append(f"v_add_f32 {vr(vL + n)}, {vr(vL + n)}, {vr(b + e)}")
                else:
                    k = e >> 1
                    val[s].append(f"v_cvt_pk_bf16_f32 {vr(b + 8 * (k >> 2) + (k & 3))}, {vr(b + e - 1)}, {vr(b + e)}")
        assert len(vs) == 32 and len(ks) == 16
        for k, s in enumerate(vs):
            assert s >= (k >> 1)
            mem[s].append(v_read(k, slot))
        for f in range(16):
            need[32 + f] = ("V", 2 * f + 1)
        for x, s in enumerate(ks):
            assert k0 + x <= s < START
            mem[s].append(k_read(x, (slot + 1) % 3))
        for x in range(16):
            need[k0 + 32 + x] = ("K", x)
        bs = o.barslot
        assert bs > max(vs) + 6
        if drain >= 0:
            sal[bs - 1].append(f"s_waitcnt vmcnt({[32, 22, 63][drain]}) lgkmcnt(0)")
            sal[bs].append("s_barrier")
            pieces = list(range(64))[[0, 22, 43][drain]:[22, 43, 64][drain]]
            s = bs + 2
            for k, p in enumerate(pieces):
                w, u, i = p >> 4, (p >> 2) & 3, p & 3
                d = aDr + 4 * (k & 7)
                mem[s].insert(0, f"ds_read_b128 {ar(d, 4)}, {vr(vDr + (i & 1))} offset:{1024 * p}")
                s2 = s + 9
                need2[s2] = ("D", k & 7)
                sal[s2].append(f"s_movk_i32 {sr(sT0)}, {(16384 * w + 4096 * i) >> 1}" if False else f"s_mov_b32 {sr(sT0)}, {16384 * w + 4096 * i}")
                off = f" offset:{1024 * u}" if u else ""
                mem[s2].insert(0, f"buffer_store_dwordx4 {ar(d, 4)}, {vr(vLane16)}, {sr(sO, 4)}, {sr(sT0)} offen{off}{self.st}")
                s += 2
            assert s + 9 < START
        elif loader:
            for i, ln in enumerate([f"s_lshr_b32 {sr(sT0)}, {sr(sQn)}, 2",
                                    f"s_mul_i32 {sr(sT0)}, {sr(sT0)}, 12288",
                                    f"s_lshl_b32 {sr(sQoff)}, {sr(sQn)}, 10",
                                    f"s_add_u32 {sr(sQoff)}, {sr(sQoff)}, {sr(sT0)}",
                                    f"s_add_u32 {sr(sQn)}, {sr(sQn)}, 1",
                                    f"s_cmp_lt_u32 {sr(sJ)}, {sr(sStop)}",
                                    f"s_cselect_b32 {sr(sA + 2)}, {sr(sSize)}, 0",
                                    f"s_mov_b32 {sr(sB + 2)}, {sr(sA + 2)}"]):
                sal[10 + i].append(ln)
            sal[bs - 1].append("s_waitcnt vmcnt(32) lgkmcnt(0)")
            sal[bs].append("s_barrier")
            sal[bs + 1] += [f"s_cmp_ge_u32 {sr(sJ)}, {sr(sQstop)}", f"s_cbranch_scc1 L_noq{tag}"]
            for w in range(4):
                sal[bs + 1] += [f"s_add_u32 m0, {sr(sQoff)}, {QREG + 4096 * w}", "s_nop 0", self.dma(sQS, vD4 + w, sQoff, 0)]
            sal[bs + 1].append(f"L_noq{tag}:")
            s = bs + 3
            for m0, ds in self.tile_groups(slot):
                sal[s - 1].append(m0)
                for d in ds:
                    mem[s].insert(0, d)
                    s += o.dstep
            assert s - o.dstep < START - 4
            sal[START - 3].append(f"s_add_u32 {sr(sG)}, {sr(sG)}, 1")
            for i, ln in enumerate(self.tile_off()):
                sal[20 + i].append(ln)
        else:
            sal[bs - 1].append("s_waitcnt lgkmcnt(0)")
            sal[bs].append("s_barrier")
        if drain < 0:
            sal[START - 4].append(f"s_add_u32 {sr(sJ)}, {sr(sJ)}, 1")
            if loader and slot == 1:
                sal[START - 2].append(f"s_cmp_eq_u32 {sr(sJ)}, {sr(sStaged)}")
                post[START - 1].append("s_cbranch_scc1 L_drain")
            elif slot < 2:
                sal[START - 2].append(f"s_cmp_eq_u32 {sr(sJ)}, 16")
                post[START - 1].append(f"s_cbranch_scc1 L_tail{NU}")
            else:
                post[START - 1].append(f"s_branch L_loop{NU}_0")
        if o.stamps > 1:
            post[70] += self.stamp_lines()
        order = [(START + i) % N for i in range(N)]
        body = []
        for s in order:
            body.append(mf[s])
            nxt = (s + 1) % N
            if nxt in need:
                body.append(("WAIT", need[nxt]))
            if s in need2:
                body.append(("WAIT", need2[s]))
            body += sal[s] + mem[s] + val[s] + post[s]

        def tagof(x):
            if x.startswith("ds_read_b128 a"):
                return ("D", (int(x.split("[")[1].split(":")[0]) - aDr) // 4)
            if x.startswith("ds_read_b128"):
                return ("K", (int(x.split("[")[1].split(":")[0]) - vK) // 4)
            return ("V", (int(x.split("[")[1].split(":")[0]) - aV) // 2)

        out = []
        done = set()
        for i, ln in enumerate(body):
            if isinstance(ln, tuple):
                if ln[1] in done:
                    continue
                cnt = young = nmf = 0
                j = i
                while True:
                    j = (j - 1) % len(body)
                    x = body[j]
                    if isinstance(x, tuple):
                        continue
                    if x.startswith("v_mfma"):
                        nmf += 1
                    if x.startswith("ds_"):
                        if tagof(x) == ln[1]:
                            break
                        cnt += 1
                        if nmf <= o.lat:
                            young += 1
                cnt = min(cnt, young, 15)
                out.append(f"s_waitcnt lgkmcnt({cnt})")
                j = i
                k = 0
                seen = set()
                for _ in range(len(body)):
                    j = (j - 1) % len(body)
                    x = body[j]
                    if isinstance(x, str) and x.startswith("ds_"):
                        k += 1
                        if k <= cnt:
                            seen.add(tagof(x))
                        elif tagof(x) not in seen:
                            done.add(tagof(x))
            else:
                if ln.startswith("ds_"):
                    done.discard(tagof(ln))
                out.append(ln)
        if o.abl:
            for key in o.abl.split(","):
                out = [x for x in out if not x.startswith(key)]
        else:
            check_hazards(out)
        check_scc(out)
        return out, [mf[s] for s in range(16)]

    def gen(self):
        o = self.o
        a = self.a
        x0, x1, x2 = vX, vX + 1, vX + 2

        a("""
        s_cmp_ge_u32 s2, 256
        s_cbranch_scc1 L_exit
        s_load_dwordx8 s[4:11], s[0:1], 0
        """)
        if o.pref:
            a(f"""
            s_getpc_b64 {sr(sT2, 2)}
            v_lshlrev_b32 {vr(vX)}, 7, v0
            v_add_u32 {vr(vX + 1)}, 0x8000, {vr(vX)}
            v_min_u32 {vr(vX + 1)}, L_exit-{NAME}_kernel-64, {vr(vX + 1)}
            global_load_dword v255, {vr(vX)}, {sr(sT2, 2)}
            global_load_dword v255, {vr(vX + 1)}, {sr(sT2, 2)}
            """)
        if o.remap == 0:
            a("s_mov_b32 s3, s2")
        elif o.remap == 1:
            a(f"""
            s_lshr_b32 s3, s2, 3
            s_and_b32 {sr(sT0)}, s2, 7
            s_lshl_b32 {sr(sT0)}, {sr(sT0)}, 5
            s_or_b32 s3, s3, {sr(sT0)}
            """)
        elif o.remap == 2:
            a(f"""
            s_lshr_b32 {sr(sT0)}, s2, 3
            s_and_b32 {sr(sT0)}, {sr(sT0)}, 7
            s_xor_b32 s3, s2, {sr(sT0)}
            """)
        elif o.remap == 3:
            a("s_xor_b32 s3, s2, 1")
        if o.stamps:
            a(f"""
            s_load_dwordx2 {sr(sDbg, 2)}, s[0:1], 40
            s_mov_b32 {sr(sDbg + 2)}, 0x100000
            s_mov_b32 {sr(sDbg + 3)}, 0x00020000
            s_mov_b32 {sr(sTS + 4)}, 0
            v_lshrrev_b32 {vr(vST + 2)}, 6, v0
            v_lshl_add_u32 {vr(vST + 2)}, s2, 2, {vr(vST + 2)}
            v_lshlrev_b32 {vr(vST + 2)}, 9, {vr(vST + 2)}
            """)
            self.stamp()
        a(f"""
        v_lshrrev_b32 {vr(x0)}, 6, v0
        v_and_b32 v0, 63, v0
        v_lshrrev_b32 {vr(x1)}, 4, v0
        v_readfirstlane_b32 {sr(sW)}, {vr(x0)}
        v_and_b32 {vr(x2)}, 15, v0
        v_lshlrev_b32 {vr(x0)}, 1, {vr(x1)}
        v_xor_b32 {vr(x2)}, {vr(x2)}, {vr(x0)}
        v_lshlrev_b32 {vr(x2)}, 4, {vr(x2)}
        v_lshl_or_b32 {vr(vD4)}, {vr(x1)}, 8, {vr(x2)}
        s_lshl_b32 {sr(sW4096)}, {sr(sW)}, 12
        s_lshr_b32 {sr(sT0)}, {sr(sW)}, 1
        s_mul_i32 {sr(sT0)}, {sr(sT0)}, 0x90
        s_and_b32 {sr(sT1)}, {sr(sW)}, 1
        s_lshl_b32 {sr(sT1)}, {sr(sT1)}, 7
        s_xor_b32 {sr(sT0)}, {sr(sT0)}, {sr(sT1)}
        s_or_b32 {sr(sT0)}, {sr(sT0)}, {sr(sW4096)}
        v_xor_b32 {vr(vDma)}, {sr(sT0)}, {vr(vD4)}
        s_lshl_b32 {sr(sT0)}, s3, 19
        s_mov_b32 {sr(sSize)}, {2 * 262144}
        s_mov_b32 {sr(sA + 3)}, 0x00020000
        s_mov_b32 {sr(sB + 3)}, 0x00020000
        s_mov_b32 {sr(sO + 3)}, 0x00020000
        s_mov_b32 {sr(sQS + 3)}, 0x00020000
        s_mov_b32 {sr(sO + 2)}, {QBYTES}
        s_mov_b32 {sr(sQS + 2)}, {QBYTES}
        s_mov_b32 {sr(sBad)}, 0
        s_mov_b32 {sr(sRedo)}, 0
        s_mov_b32 {sr(sHl)}, 0
        s_mov_b32 {sr(sPl)}, 0
        v_and_b32 {vr(x0)}, 15, v0
        v_lshlrev_b32 {vr(x0)}, 8, {vr(x0)}
        v_lshl_or_b32 {vr(x0)}, {vr(x1)}, 4, {vr(x0)}
        s_add_u32 {sr(sT1)}, {sr(sW4096)}, 65536
        v_add_u32 {vr(vQ4)}, {sr(sT1)}, {vr(x0)}
        s_waitcnt lgkmcnt(0)
        s_add_u32 {sr(sA)}, {sr(sK)}, {sr(sT0)}
        s_addc_u32 {sr(sA + 1)}, {sr(sK + 1)}, 0
        s_add_u32 {sr(sB)}, {sr(sV)}, {sr(sT0)}
        s_addc_u32 {sr(sB + 1)}, {sr(sV + 1)}, 0
        s_mov_b32 {sr(sO)}, {sr(sOUT)}
        s_mov_b32 {sr(sO + 1)}, {sr(sOUT + 1)}
        """)
        if o.stag:
            a(f"""
            s_lshr_b32 {sr(sT0)}, s2, 3
            s_and_b32 {sr(sT0)}, {sr(sT0)}, {o.stagm}
            """)
            a.label("L_stag")
            a(f"""
            s_cmp_eq_u32 {sr(sT0)}, 0
            s_cbranch_scc1 L_start
            s_sleep {o.stag}
            s_sub_u32 {sr(sT0)}, {sr(sT0)}, 1
            s_branch L_stag
            """)
        a.label("L_start")
        a(f"""
        s_lshl_b32 {sr(sT0)}, s3, 1
        s_add_u32 {sr(sT0)}, {sr(sT0)}, {sr(sHl)}
        s_mul_i32 {sr(sT0)}, {sr(sT0)}, {QBYTES}
        s_add_u32 {sr(sQS)}, {sr(sQ)}, {sr(sT0)}
        s_addc_u32 {sr(sQS + 1)}, {sr(sQ + 1)}, 0
        s_mov_b32 {sr(sPrev)}, 0
        s_lshl_b32 {sr(sG)}, {sr(sHl)}, 4
        s_lshr_b32 {sr(sRot)}, s2, {o.rotsh}
        s_mul_i32 {sr(sRot)}, {sr(sRot)}, {o.rotmul}
        s_mov_b32 {sr(sA + 2)}, {sr(sSize)}
        s_mov_b32 {sr(sB + 2)}, {sr(sSize)}
        s_mov_b32 {sr(sStaged)}, 0
        """)
        a(self.tile_off())
        for u in range(4):
            a(f"s_mov_b32 {sr(sQoff)}, {TILE * u}")
            a(f"s_add_u32 m0, {sr(sW4096)}, {QREG + TILE * u}")
            a("s_nop 0")
            for i in range(4):
                a(self.dma(sQS, vDma, sQoff, i))
        a(self.q4_loads())
        for half in (0, 1):
            a(f"s_add_u32 m0, {sr(sW4096)}, {half * VREG}")
            a("s_nop 0")
            for i in range(4):
                a(self.dma(sA if half == 0 else sB, vDma, sOff, i))
        a(self.tile_advance())
        a(f"""
        v_xor_b32 {vr(vD4 + 1)}, {0x1080}, {vr(vD4)}
        v_xor_b32 {vr(vD4 + 2)}, {0x2090}, {vr(vD4)}
        v_xor_b32 {vr(vD4 + 3)}, {0x3010}, {vr(vD4)}
        """)
        a(f"""
        v_and_b32 {vr(x0)}, 3, v0
        v_bfe_u32 {vr(x1)}, v0, 2, 2
        v_lshl_or_b32 {vr(x2)}, {vr(x1)}, 4, {vr(x0)}
        v_lshlrev_b32 {vr(vKg)}, 8, {vr(x2)}
        v_and_b32 {vr(x0)}, 7, v0
        v_lshlrev_b32 {vr(x0)}, 1, {vr(x0)}
        v_bfe_u32 {vr(x1)}, v0, 3, 1
        v_mul_u32_u24 {vr(x1)}, 9, {vr(x1)}
        v_xor_b32 {vr(x0)}, {vr(x0)}, {vr(x1)}
        v_lshrrev_b32 {vr(x1)}, 4, v0
        v_xor_b32 {vr(x0)}, {vr(x0)}, {vr(x1)}
        v_lshl_or_b32 {vr(vKg)}, {vr(x0)}, 4, {vr(vKg)}
        """)
        a(f"""
        v_bfe_u32 {vr(x0)}, v0, 2, 2
        v_lshrrev_b32 {vr(x1)}, 4, v0
        v_lshl_or_b32 {vr(x2)}, {vr(x1)}, 4, {vr(x0)}
        v_lshlrev_b32 {vr(vVA)}, 8, {vr(x2)}
        v_bfe_u32 {vr(x0)}, v0, 2, 3
        v_lshlrev_b32 {vr(x0)}, 1, {vr(x0)}
        v_lshrrev_b32 {vr(x1)}, 5, v0
        v_mul_u32_u24 {vr(x1)}, 9, {vr(x1)}
        v_xor_b32 {vr(x0)}, {vr(x0)}, {vr(x1)}
        v_bfe_u32 {vr(x1)}, v0, 1, 1
        v_xor_b32 {vr(x0)}, {vr(x0)}, {vr(x1)}
        v_lshl_or_b32 {vr(vVA)}, {vr(x0)}, 4, {vr(vVA)}
        v_and_b32 {vr(x1)}, 1, v0
        v_lshl_or_b32 {vr(vVA)}, {vr(x1)}, 3, {vr(vVA)}
        v_add_u32 {vr(vVA)}, {VREG}, {vr(vVA)}
        """)
        a(f"""
        v_and_b32 {vr(x0)}, 15, v0
        v_lshrrev_b32 {vr(x1)}, 4, v0
        v_xor_b32 {vr(x2)}, {vr(x0)}, {vr(x1)}
        v_lshlrev_b32 {vr(x2)}, 4, {vr(x2)}
        v_lshl_or_b32 {vr(vEr)}, {vr(x1)}, 8, {vr(x2)}
        v_and_b32 {vr(x2)}, 7, v0
        v_lshrrev_b32 {vr(vEw)}, 5, v0
        v_xor_b32 {vr(x2)}, {vr(x2)}, {vr(vEw)}
        v_lshlrev_b32 {vr(x2)}, 4, {vr(x2)}
        v_lshl_or_b32 {vr(vEw)}, {vr(x0)}, 8, {vr(x2)}
        v_and_b32 {vr(x1)}, 1, {vr(x1)}
        v_lshl_or_b32 {vr(vEw)}, {vr(x1)}, 3, {vr(vEw)}
        v_lshlrev_b32 {vr(vLane16)}, 4, v0
        s_mov_b32 {sr(sC)}, {CSCALE:#x}
        s_mov_b32 {sr(sC + 1)}, {CSCALE:#x}
        s_mov_b32 {sr(sLim)}, {LIMIT:#x}
        s_mov_b32 {sr(sMask)}, 0xffff0000
        s_lshl_b32 {sr(sT0)}, {sr(sW)}, 14
        s_add_u32 {sr(sT0)}, {sr(sT0)}, {QREG}
        """)
        for c in range(4):
            a(f"v_xor_b32 {vr(vKA + c)}, {c << 6}, {vr(vKg)}")
        for d in range(1, 8):
            a(f"v_xor_b32 {vr(vVA + d)}, {d << 5}, {vr(vVA)}")
        a(f"v_add_u32 {vr(vKg)}, {sr(sT0)}, {vr(vKg)}")
        for r in range(4):
            a(f"v_mov_b32 {vr(vZ + r)}, 0")
        a(self.q_addr())
        z = vr(vZ, 4)
        for i in range(10):
            a(f"{M32} {ar(16 * i, 16)}, {z}, {z}, 0")
        a("""
        s_waitcnt vmcnt(12)
        s_barrier
        """)
        self.stamp()
        a(self.q_reads())
        a(f"""
        s_cmp_lg_u32 {sr(sW)}, 3
        s_cbranch_scc1 L_pro
        """)
        self.loader_tile(1)
        a("s_branch L_pro")
        a.label("L_trans")
        self.stamp()
        self.epilogue_head()
        a(f"""
        s_cmp_eq_u32 {sr(sNext)}, 0
        s_cbranch_scc1 L_final
        """)
        self.epilogue(True)
        a.label("L_pro")
        self.stamp()
        self.prologue()
        self.stamp()
        a(f"""
        s_cmp_eq_u32 {sr(sW)}, 3
        s_cbranch_scc1 L_ent4
        s_cmp_eq_u32 {sr(sPrev)}, 0
        s_cbranch_scc0 L_loop5_1
        """)
        for NU in (5, 4):
            if NU == 4:
                a.label("L_ent4")
                a(f"""
                s_cmp_eq_u32 {sr(sPrev)}, 0
                s_cbranch_scc0 L_loop4_1
                """)
            a(".p2align 6")
            for slot in range(3):
                body, tail = self.loop_third(NU, slot, f"{NU}{slot}")
                a.label(f"L_loop{NU}_{slot}")
                a(body)
            if NU == 4:
                a.label("L_drain")
                for d in range(3):
                    body, tail = self.loop_third(NU, (2 + d) % 3, f"d{d}", d)
                    a(body)
            a.label(f"L_tail{NU}")
            self.stamp()
            qa = self.q_addr()
            qr = self.q_reads()
            for i in range(16):
                a(tail[i])
                if i == 0:
                    a(qa)
                elif i <= 8:
                    a(qr[2 * i - 2: 2 * i])
            if NU == 5:
                a("s_waitcnt vmcnt(0)")
            a(f"""
            s_mov_b32 {sr(sPrev)}, 1
            s_branch L_trans
            """)
        a.label("L_final")
        self.epilogue(False)
        if o.stamps:
            self.stamp()
            a("s_waitcnt vmcnt(0)")
            self.stamp()
        a(f"""
        s_lshl_b32 {sr(sT1)}, {sr(sW)}, 2
        s_add_u32 {sr(sT1)}, {sr(sT1)}, {VREG + TILE}
        v_mov_b32 {vr(x0)}, {sr(sBad)}
        v_mov_b32 {vr(x1)}, {sr(sT1)}
        ds_write_b32 {vr(x1)}, {vr(x0)}
        v_mov_b32 {vr(x1)}, {VREG + TILE}
        s_waitcnt lgkmcnt(0)
        s_barrier
        ds_read_b128 {vr(vK, 4)}, {vr(x1)}
        s_waitcnt lgkmcnt(0)
        v_or_b32 {vr(x0)}, {vr(vK)}, {vr(vK + 1)}
        v_or3_b32 {vr(x0)}, {vr(x0)}, {vr(vK + 2)}, {vr(vK + 3)}
        s_nop 1
        v_readfirstlane_b32 {sr(sBad)}, {vr(x0)}
        s_nop 3
        s_cmp_eq_u32 {sr(sBad)}, 0
        s_cbranch_scc1 L_exit
        s_waitcnt vmcnt(0)
        s_barrier
        s_and_b32 {sr(sT0)}, {sr(sBad)}, 1
        s_xor_b32 {sr(sHl)}, {sr(sT0)}, 1
        s_lshl_b32 {sr(sT0)}, 1, {sr(sHl)}
        s_andn2_b32 {sr(sBad)}, {sr(sBad)}, {sr(sT0)}
        s_mov_b32 {sr(sRedo)}, 1
        s_branch L_start
        """)
        a.label("L_exit")
        a("s_endpgm")

    def q_addr(self):
        return [f"v_xor_b32 {vr(vM + c)}, {c << 6}, {vr(vKg)}" for c in range(4)]

    def q_reads(self):
        L = []
        for u in range(4):
            for c in range(4):
                L.append(f"ds_read_b128 {vr(vQ + 16 * u + 4 * c, 4)}, {vr(vM + c)}" + (f" offset:{1024 * u}" if u else ""))
        return L

    def allreduce5(self, op, base, tmp):
        L = []
        for sw in ("v_permlane16_swap_b32", "v_permlane32_swap_b32"):
            for u in range(5):
                L.append(f"v_mov_b32 {vr(tmp + u)}, {vr(base + u)}")
            for u in range(5):
                L.append(f"{sw} {vr(base + u)}, {vr(tmp + u)}")
            for u in range(5):
                L.append(f"{op} {vr(base + u)}, {vr(base + u)}, {vr(tmp + u)}")
        return L

    def epilogue_head(self):
        a = self.a
        o = self.o
        inv = vNM
        a(self.allreduce5("v_add_f32", vL, vM))
        for u in range(5):
            a(f"v_rcp_f32 {vr(inv + 2 * u)}, {vr(vL + u)}")
        a(f"v_cmp_ngt_f32 {sr(sT2, 2)}, {sr(sLim)}, {vr(vL)}")
        for u in range(1, 5):
            a(f"v_cmp_ngt_f32 vcc, {sr(sLim)}, {vr(vL + u)}")
            a(f"s_or_b64 {sr(sT2, 2)}, {sr(sT2, 2)}, vcc")
        a(f"""
        s_cmp_lg_u64 {sr(sT2, 2)}, 0
        s_cselect_b32 {sr(sT0)}, 1, 0
        s_lshl_b32 {sr(sT0)}, {sr(sT0)}, {sr(sPl)}
        s_cmp_eq_u32 {sr(sRedo)}, 0
        s_cselect_b32 {sr(sT0)}, {sr(sT0)}, 0
        s_or_b32 {sr(sBad)}, {sr(sBad)}, {sr(sT0)}
        s_add_u32 {sr(sT1)}, {sr(sW4096)}, 65536
        """)
        if o.abl:
            a(f"s_mov_b32 {sr(sBad)}, 0")

    def set_o(self):
        self.a(f"""
        s_lshl_b32 {sr(sT0)}, s3, 1
        s_add_u32 {sr(sT0)}, {sr(sT0)}, {sr(sPl)}
        s_mul_i32 {sr(sT0)}, {sr(sT0)}, {QBYTES}
        s_add_u32 {sr(sO)}, {sr(sOUT)}, {sr(sT0)}
        s_addc_u32 {sr(sO + 1)}, {sr(sOUT + 1)}, 0
        """)

    def epilogue(self, mid):
        a = self.a
        o = self.o
        tag = "m" if mid else "f"
        inv = vNM
        wa = vNM + 10
        ra = vNM + 14
        cv = vS
        rb = vS + 16
        z = vr(vZ, 4)
        if not mid:
            a(f"""
            s_cmp_eq_u32 {sr(sStaged)}, 0
            s_cbranch_scc1 L_no4
            s_cmp_eq_u32 {sr(sW)}, 3
            s_cbranch_scc1 L_no4
            """)
            for i in range(4):
                off = f" offset:{1024 * i}" if i else ""
                a(f"buffer_store_dwordx4 {ar(aO4 + 4 * i, 4)}, {vr(vLane16)}, {sr(sO, 4)}, {sr(sT1)} offen{off}{self.st}")
            a.label("L_no4")
        self.set_o()
        a(f"s_lshl_b32 {sr(sEo)}, {sr(sW)}, 14")
        if mid:
            a(f"s_add_u32 {sr(sT0)}, {sr(sEo)}, {QREG}")
        else:
            a(f"""
            s_cmp_eq_u32 {sr(sStaged)}, 0
            s_cselect_b32 {sr(sT0)}, {QREG}, 0
            s_add_u32 {sr(sT0)}, {sr(sT0)}, {sr(sEo)}
            s_add_u32 {sr(sEo + 1)}, {sr(sEo)}, 4096
            s_add_u32 {sr(sEo + 2)}, {sr(sEo)}, 8192
            s_add_u32 {sr(sEo + 3)}, {sr(sEo)}, 12288
            """)
        a(f"v_add_u32 {vr(wa)}, {sr(sT0)}, {vr(vEw)}")
        a(f"v_add_u32 {vr(ra)}, {sr(sT0)}, {vr(vEr)}")
        for k in range(1, 4):
            a(f"v_xor_b32 {vr(wa + k)}, {k << 5}, {vr(wa)}")
        a(f"v_xor_b32 {vr(ra + 1)}, 64, {vr(ra)}")

        def store(u, i):
            if u < 4:
                off = f" offset:{1024 * u}" if u else ""
                so = sEo + i
            else:
                off = f" offset:{1024 * i}" if i else ""
                so = sT1
            if o.nost:
                return "s_nop 0"
            return f"buffer_store_dwordx4 {vr(rb + 16 * (u & 1) + 4 * i, 4)}, {vr(vLane16)}, {sr(sO, 4)}, {sr(so)} offen{off}{self.st}"

        def convert(u, eb, extra=None):
            for dt in range(8):
                tb = cv + 4 * (dt & 3)
                acc = aO + 32 * u + 4 * dt
                for r in range(4):
                    a(f"v_accvgpr_read_b32 {vr(tb + r)}, {ar(acc + r)}")
                for r in range(2):
                    a(f"v_pk_mul_f32 {vr(tb + 2 * r, 2)}, {vr(tb + 2 * r, 2)}, {vr(inv + 2 * u, 2)} op_sel_hi:[1,0]")
                for r in range(2):
                    a(f"v_cvt_pk_bf16_f32 {vr(tb + r)}, {vr(tb + 2 * r)}, {vr(tb + 2 * r + 1)}")
                if mid:
                    a(f"{M16} {ar(acc, 4)}, {z}, {z}, 0")
                if extra and dt == 3:
                    a("s_waitcnt lgkmcnt(3)")
                a(f"ds_write_b64 {vr(wa + (dt & 3))}, {vr(tb, 2)} offset:{eb + 128 * (dt >> 2)}")
                if extra and 3 <= dt < 7:
                    a(extra[dt - 3])

        if mid:
            a(f"""
            s_mov_b32 {sr(sStaged)}, 13
            s_cmp_eq_u32 {sr(sW)}, 3
            s_cbranch_scc0 L_m4
            v_add_u32 {vr(vDr)}, {QREG}, {vr(vEr)}
            v_xor_b32 {vr(vDr + 1)}, 64, {vr(vDr)}
            s_branch L_m03
            """)
            a.label("L_m4")
            convert(4, 0)
            for i in range(4):
                a(f"ds_read_b128 {ar(aO4 + 4 * i, 4)}, {vr(ra + (i & 1))} offset:{1024 * i}")
            a.label("L_m03")
            for u in range(4):
                convert(u, 4096 * u)
            return
        for u in range(5):
            if u == 4:
                a(f"""
                s_cmp_eq_u32 {sr(sW)}, 3
                s_cbranch_scc1 L_epi3
                """)
            eb = (u & 3) * 4096
            convert(u, eb, [store(u - 1, i) for i in range(4)] if u else None)
            for i in range(4):
                a(f"ds_read_b128 {vr(rb + 16 * (u & 1) + 4 * i, 4)}, {vr(ra + (i & 1))} offset:{eb + 1024 * i}")
        for i in range(4):
            a(f"s_waitcnt lgkmcnt({3 - i})")
            a(store(4, i))
        a("s_branch L_epidone")
        a.label("L_epi3")
        for i in range(4):
            a(f"s_waitcnt lgkmcnt({3 - i})")
            a(store(3, i))
        a.label("L_epidone")

    def prologue(self):
        a = self.a
        x0, x1 = vX, vX + 1
        a(f"""
        s_cmp_eq_u32 {sr(sPrev)}, 0
        s_cselect_b32 {sr(sPl)}, {sr(sHl)}, 1
        s_or_b32 {sr(sT0)}, {sr(sPl)}, {sr(sRedo)}
        s_xor_b32 {sr(sNext)}, {sr(sT0)}, 1
        s_mul_i32 {sr(sQstop)}, {sr(sNext)}, 15
        s_mul_i32 {sr(sStop)}, {sr(sNext)}, 3
        s_add_u32 {sr(sStop)}, {sr(sStop)}, 13
        s_add_u32 {sr(sQS)}, {sr(sQS)}, {QBYTES}
        s_addc_u32 {sr(sQS + 1)}, {sr(sQS + 1)}, 0
        s_mov_b32 {sr(sJ)}, 0
        s_mov_b32 {sr(sQn)}, 1
        s_waitcnt lgkmcnt(0)
        """)
        tq = vS

        def scale(d0, d1):
            for d in range(d0, d1, 2):
                t0 = tq + 4 * ((d >> 1) & 3)
                for u in range(2):
                    a(f"v_lshlrev_b32 {vr(t0 + 2 * u)}, 16, {vr(vQ + d + u)}")
                    a(f"v_and_b32 {vr(t0 + 2 * u + 1)}, {sr(sMask)}, {vr(vQ + d + u)}")
                for u in range(2):
                    a(f"v_pk_mul_f32 {vr(t0 + 2 * u, 2)}, {vr(t0 + 2 * u, 2)}, {sr(sC, 2)}")
                for u in range(2):
                    a(f"v_cvt_pk_bf16_f32 {vr(vQ + d + u)}, {vr(t0 + 2 * u)}, {vr(t0 + 2 * u + 1)}")

        scale(0, 64)
        a(f"""
        s_cmp_eq_u32 {sr(sW)}, 3
        s_cbranch_scc1 L_q4done
        s_cmp_eq_u32 {sr(sPrev)}, 0
        s_cbranch_scc0 L_q4ok
        s_waitcnt vmcnt(8)
        """)
        a.label("L_q4ok")
        for d in range(16):
            a(f"v_accvgpr_read_b32 {vr(vQ + 64 + d)}, {ar(aQ4 + d)}")
        scale(64, 80)
        a.label("L_q4done")
        for u in range(5):
            a(f"v_mov_b32 {vr(vM + u)}, {NEGINF:#x}")
        z = vr(vZ, 4)
        zl = [f"{M32} {ar(aV + 16 * i, 16)}, {z}, {z}, 0" for i in range(4)]
        a(f"""
        s_mov_b32 {sr(sT3)}, 0
        s_cmp_eq_u32 {sr(sPrev)}, 0
        s_cbranch_scc0 L_maxgo
        s_cmp_eq_u32 {sr(sW)}, 3
        s_waitcnt vmcnt(32)
        s_cbranch_scc1 L_t0w
        s_waitcnt vmcnt(0)
        """)
        a.label("L_t0w")
        a("s_barrier")
        a(f"""
        s_lshl_b32 {sr(sT3)}, {sr(sRedo)}, 6
        s_lshl_b32 {sr(sT2)}, {sr(sPl)}, 18
        v_and_b32 {vr(x0)}, 15, v0
        v_lshlrev_b32 {vr(x0)}, 8, {vr(x0)}
        v_lshrrev_b32 {vr(x1)}, 4, v0
        v_lshl_or_b32 {vr(x0)}, {vr(x1)}, 4, {vr(x0)}
        """)
        a.label("L_max")
        a(f"""
        s_cmp_eq_u32 {sr(sT3)}, 0
        s_cbranch_scc1 L_maxlds
        """)
        for c in range(4):
            a(f"buffer_load_dwordx4 {vr(vK + 4 * c, 4)}, {vr(x0)}, {sr(sA, 4)}, {sr(sT2)} offen offset:{64 * c}")
        a(f"""
        s_add_u32 {sr(sT2)}, {sr(sT2)}, 4096
        s_waitcnt vmcnt(0)
        s_branch L_maxgo
        """)
        a.label("L_maxlds")
        for x in range(16):
            a(k_read(x, 0))
        a("s_waitcnt lgkmcnt(12)")
        a.label("L_maxgo")
        mb = vS + 16
        for u in range(5):
            for c in range(4):
                a(qk_mfma(u, mb + 4 * u, c, "0"))
            if u >= 2:
                b = mb + 4 * (u - 2)
                a(f"v_max3_f32 {vr(vM + u - 2)}, {vr(vM + u - 2)}, {vr(b)}, {vr(b + 1)}")
                a(f"v_max3_f32 {vr(vM + u - 2)}, {vr(vM + u - 2)}, {vr(b + 2)}, {vr(b + 3)}")
        a(zl[0])
        a("s_nop 2")
        for u in (3, 4):
            b = mb + 4 * u
            a(f"v_max3_f32 {vr(vM + u)}, {vr(vM + u)}, {vr(b)}, {vr(b + 1)}")
            a(f"v_max3_f32 {vr(vM + u)}, {vr(vM + u)}, {vr(b + 2)}, {vr(b + 3)}")
        a(f"""
        s_sub_u32 {sr(sT3)}, {sr(sT3)}, 1
        s_cbranch_scc0 L_max
        """)
        rest = self.allreduce5("v_max_f32", vM, vS)
        k = 1
        for i, ln in enumerate(rest):
            if i % 8 == 0 and k < 4:
                a(zl[k])
                k += 1
            a(ln)
        for r in range(4):
            a(f"v_sub_f32 {vr(vNM + r)}, 0, {vr(vM)}")
        a("s_waitcnt lgkmcnt(0)")
        rest = []
        for u in range(1, 5):
            for r in range(4):
                rest.append(f"v_sub_f32 {vr(vNM + 4 * u + r)}, 0, {vr(vM + u)}")
        for u in range(5):
            rest.append(f"v_mov_b32 {vr(vL + u)}, 0")
        for r in (0, 1, 2, 3, 8, 9, 10, 11):
            rest.append(f"v_mov_b32 {vr(vS + 32 + r)}, 0")
        a(rest[:1])
        rest = rest[1:]
        for x in range(8):
            a(qk_mfma(0, vS + 4 * (x >> 2), x, vr(vNM, 4)))
            a(rest[4 * x: 4 * x + 4])
        a(f"""
        s_cmp_eq_u32 {sr(sPrev)}, 0
        s_cbranch_scc0 L_prodone
        s_cmp_eq_u32 {sr(sW)}, 3
        s_cbranch_scc1 L_pro3
        s_cmp_eq_u32 {sr(sNext)}, 0
        s_cbranch_scc1 L_prodone
        """)
        a(self.q4_loads())
        a("s_branch L_prodone")
        a.label("L_pro3")
        a(f"""
        s_cmp_eq_u32 {sr(sNext)}, 0
        s_cbranch_scc1 L_nonext
        s_mov_b32 {sr(sQoff)}, 0
        """)
        for w in range(4):
            a([f"s_mov_b32 m0, {QREG + 4096 * w}", "s_nop 0", self.dma(sQS, vD4 + w, sQoff, 0)])
        a.label("L_nonext")
        self.loader_tile(2)
        a.label("L_prodone")

    def text(self):
        return (HEADER + f""".amdgcn_target "amdgcn-amd-amdhsa--gfx950"
.text
.globl {NAME}_kernel
.p2align 8
.type {NAME}_kernel,@function
{NAME}_kernel:
""" + self.a.text() + f""".section .rodata,"a"
.p2align 6
.amdhsa_kernel {NAME}_kernel
  .amdhsa_next_free_vgpr 512
  .amdhsa_next_free_sgpr {NSGPR}
  .amdhsa_accum_offset 256
  .amdhsa_group_segment_fixed_size 0
  .amdhsa_kernarg_size 48
  .amdhsa_user_sgpr_count 2
  .amdhsa_user_sgpr_kernarg_segment_ptr 1
  .amdhsa_system_sgpr_workgroup_id_x 1
.end_amdhsa_kernel
""")


_REG = re.compile(r"\b([va])(?:(\d+)|\[(\d+):(\d+)\])")


def regs(op):
    m = _REG.fullmatch(op.strip())
    if not m:
        return set()
    lo = int(m.group(2) or m.group(3))
    hi = int(m.group(2) or m.group(4))
    return {(m.group(1), i) for i in range(lo, hi + 1)}


def check_scc(body):
    last = None
    for ln in body:
        mn = ln.split(" ")[0]
        if mn.startswith(("s_cselect", "s_cbranch_scc")):
            assert last is not None and last.startswith("s_cmp"), (last, ln)
        if mn.startswith(("s_cmp", "s_add", "s_sub", "s_and", "s_or", "s_xor", "s_lsh", "s_mul_hi")):
            last = mn


def check_hazards(body, cyclic=True):
    ins = [ln for ln in body if not ln.endswith(":")]
    seq = ins + ins if cyclic else ins
    info = []
    for ln in seq:
        mn, _, rest = ln.partition(" ")
        ops = [x.strip().split(" ")[0] for x in rest.split(",")] if rest else []
        info.append((mn, ops, ln))

    def states(i, j):
        n = 0
        for k in range(i + 1, j):
            mn, ops, _ = info[k]
            n += int(ops[0]) + 1 if mn == "s_nop" else 1
        return n

    N = len(seq)
    for i, (mn, ops, ln) in enumerate(info[: len(ins)]):
        if mn.startswith("v_mfma"):
            big = "32x32" in mn
            dAB, dC, dV, dW = (12, 10, 12, 7) if big else (8, 6, 8, 3)
            d = regs(ops[0])
            c = regs(ops[3])
            for j in range(i + 1, min(N, i + 20)):
                mn2, ops2, ln2 = info[j]
                if mn2.startswith("v_mfma"):
                    if (regs(ops2[1]) | regs(ops2[2])) & d and states(i, j) < dAB:
                        raise SystemExit(f"hazard mfma D->AB: {ln} -> {ln2}")
                    c2 = regs(ops2[3])
                    if c2 & d and c2 != d and states(i, j) < dC:
                        raise SystemExit(f"hazard mfma D->C overlap: {ln} -> {ln2}")
                elif mn2.startswith(("v_", "ds_", "buffer_")):
                    touched = set()
                    for o_ in ops2:
                        touched |= regs(o_)
                    if touched & d and states(i, j) < dV:
                        raise SystemExit(f"hazard mfma D->valu ({states(i, j)}): {ln} -> {ln2}")
                    if mn2.startswith("v_") and regs(ops2[0]) & c and states(i, j) < dW:
                        raise SystemExit(f"hazard mfma C war: {ln} -> {ln2}")
        elif mn.startswith("v_"):
            d = regs(ops[0])
            if "permlane" in mn:
                d |= regs(ops[1])
            for j in range(i + 1, min(N, i + 4)):
                mn2, ops2, ln2 = info[j]
                if mn2.startswith("v_mfma"):
                    if (regs(ops2[1]) | regs(ops2[2]) | regs(ops2[3])) & d and states(i, j) < 2:
                        raise SystemExit(f"hazard valu->mfma: {ln} -> {ln2}")
                elif "permlane" in mn2 and (regs(ops2[0]) | regs(ops2[1])) & d and states(i, j) < 2:
                    raise SystemExit(f"hazard valu->permlane: {ln} -> {ln2}")
                elif mn in ("v_exp_f32", "v_rcp_f32") and mn2.startswith("v_") and states(i, j) < 1:
                    src = set()
                    for o_ in ops2[1:]:
                        src |= regs(o_)
                    if src & d:
                        raise SystemExit(f"hazard trans->valu: {ln} -> {ln2}")
        elif mn.startswith("buffer_store_dwordx4"):
            d = regs(ops[0])
            for j in range(i + 1, min(N, i + 3)):
                mn2, ops2, ln2 = info[j]
                if mn2.startswith(("v_", "ds_read")) and regs(ops2[0]) & d and states(i, j) < 2:
                    raise SystemExit(f"hazard store data war: {ln} -> {ln2}")
        elif mn.startswith("s_") and ops and ops[0] == "m0":
            if i + 1 < N and info[i + 1][0].startswith("buffer_"):
                raise SystemExit(f"hazard m0: {ln}")


def ilist(s):
    return [int(x) for x in s.split(",")]


def main():
    p = argparse.ArgumentParser()
    p.add_argument("-o", default=f"cdna_kernels/{NAME}.s")
    p.add_argument("--nt", type=int, default=1)
    p.add_argument("--stmode", type=int, default=4)
    p.add_argument("--vslots", type=ilist, default=[1, 1, 4, 4, 7, 7, 10, 10, 13, 13, 16, 16, 19, 19, 22, 22, 25, 25, 28, 28,
                                                    30, 30, 31, 31, 32, 32, 33, 33, 34, 34, 35, 35])
    p.add_argument("--kslots", type=ilist, default=[120, 120, 124, 124, 128, 128, 132, 132, 136, 136, 140, 140, 144, 144, 148, 148])
    p.add_argument("--fat", type=ilist, default=[])
    p.add_argument("--elag", type=int, default=4)
    p.add_argument("--barslot", type=int, default=48)
    p.add_argument("--dstep", type=int, default=2)
    p.add_argument("--lat", type=int, default=7)
    p.add_argument("--stag", type=int, default=0)
    p.add_argument("--stagm", type=int, default=3)
    p.add_argument("--pref", type=int, default=1)
    p.add_argument("--nost", type=int, default=0)
    p.add_argument("--remap", type=int, default=1)
    p.add_argument("--rotsh", type=int, default=0)
    p.add_argument("--rotmul", type=int, default=0)
    p.add_argument("--abl", default="")
    p.add_argument("--stamps", type=int, default=0)
    o = p.parse_args()
    g = Gen(o)
    if not o.fat:
        found = []
        busy = set(o.vslots) | set(o.kslots)
        while g.schedule(5, o.vslots, o.kslots, found) is None:
            ft = g.fail_t
            cand = [(152 + t) % 160 for t in range(max(1, ft - 27), ft)]
            cand = [c for c in cand if c not in busy and c not in found]
            best = max(cand, key=lambda c: min([abs(c - f) for f in found] + [9]) * 100 - cand.index(c))
            found.append(best)
            assert len(found) < 40
        o.fat = found
        print("fat slots:", found)
    g.gen()
    if not o.abl:
        check_hazards(g.a.lines, cyclic=False)
    open(o.o, "w").write(g.text())


if __name__ == "__main__":
    main()
```

```python
import argparse
import re
import struct

NAME = "standalone__mha_softmax__near_ridge"

HEADER = """; Kernarg layout for this problem (48 bytes, ptrs only, base s[0:1]):
; @launch grid=(256,1,1) block=(256,1,1) lds=163840
"""

QBYTES = 304 * 256
TILE = 16384
VREG = 3 * TILE
QREG = 6 * TILE


def f2u(x):
    return struct.unpack("<I", struct.pack("<f", x))[0]


CSCALE = f2u((128.0 ** -0.5) * 1.4426950408889634)
LIMIT = f2u(2.0 ** 40)
NEGINF = 0xFF800000

sQ, sK, sV, sOUT = 4, 6, 8, 10
sA, sB, sO, sQS = 12, 16, 20, 24
sOff, sQoff, sG, sStop = 28, 29, 30, 31
sRot = 34
sStaged = 35
sQstop, sSize = 32, 33
sW4096, sJ = 36, 37
sMask = 39
sEo = 40
sRelax, sBad, sRedo = 44, 45, 46
sW, sNext, sPrev = 47, 48, 49
sC = 50
sT0, sT1, sT2, sT3 = 54, 55, 56, 57
sQn = 58
sLim = 62
sHl = 63
sPl = 64
sDbg = 68
sTS = 72
NSGPR = 80

vDma = 1
vKA = 2
vVA = 6
vL = 14
vM = 19
vKg, vQ4, vEw, vEr, vLane16 = 24, 25, 26, 27, 28
vX = 29
vQ = 32
vNM = 112
vZ = 132
vS = 136
vK = 184
vD4 = 248
vST = 252
aO = 0
aV = 160
aQ4 = 224
aO4 = 240
vDr = vQ + 64
aDr = aO + 128

M16 = "v_mfma_f32_16x16x32_bf16"
M32 = "v_mfma_f32_32x32x16_bf16"
EROW = 272
UBS = {5: [0, 1, 0, 1, 2], 4: [0, 1, 0, 2]}


class Asm:
    def __init__(self):
        self.lines = []

    def __call__(self, s):
        if isinstance(s, list):
            for x in s:
                self(x)
            return
        for ln in s.strip("\n").split("\n"):
            ln = ln.strip()
            if ln:
                self.lines.append(ln)

    def label(self, n):
        self.lines.append(n + ":")

    def text(self):
        out = []
        for ln in self.lines:
            out.append(ln if ln.endswith(":") or ln.startswith(".") else "    " + ln)
        return "\n".join(out) + "\n"


def vr(b, n=1):
    return f"v{b}" if n == 1 else f"v[{b}:{b + n - 1}]"


def ar(b, n=1):
    return f"a{b}" if n == 1 else f"a[{b}:{b + n - 1}]"


def sr(b, n=1):
    return f"s{b}" if n == 1 else f"s[{b}:{b + n - 1}]"


def qk_mfma(u, dst, x, cinit):
    c = x & 3
    d = vr(dst, 4)
    return f"{M16} {d}, {vr(vK + 4 * x, 4)}, {vr(vQ + 16 * u + 4 * c, 4)}, {d if c else cinit}"


def pv_mfma(u, buf, f):
    dt, t = f >> 1, f & 1
    d = ar(aO + 32 * u + 4 * dt, 4)
    return f"{M16} {d}, {ar(aV + 4 * f, 4)}, {vr(vS + 16 * buf + 8 * t, 4)}, {d}"


def k_read(x, slot):
    off = TILE * slot + 1024 * (x >> 2)
    return f"ds_read_b128 {vr(vK + 4 * x, 4)}, {vr(vKA + (x & 3))}" + (f" offset:{off}" if off else "")


def v_read(k, slot):
    f, jj = k >> 1, k & 1
    dt, t = f >> 1, f & 1
    off = TILE * slot + 1024 * (2 * t + jj)
    return f"ds_read_b64_tr_b16 {ar(aV + 4 * f + 2 * jj, 2)}, {vr(vVA + dt)}" + (f" offset:{off}" if off else "")


class Gen:
    def __init__(self, opt):
        self.o = opt
        self.a = Asm()
        self.nt = {0: "", 1: " nt", 2: " sc1 nt", 3: " sc0 sc1 nt", 4: " sc0 nt", 5: " sc1", 6: " sc0 sc1"}[opt.nt]
        self.st = {0: "", 1: " nt", 2: " sc1", 3: " sc0 sc1", 4: " sc1 nt", 5: " sc0 sc1 nt"}[opt.stmode]

    def dma(self, srd, voff, soff, i):
        o = f" offset:{1024 * i}" if i else ""
        return f"buffer_load_dwordx4 {vr(voff)}, {sr(srd, 4)}, {sr(soff)} offen{o}{self.nt} lds"

    def tile_groups(self, slot):
        G = []
        for half in (0, 1):
            for w in range(4):
                m0 = half * VREG + slot * TILE + 4096 * w
                G.append((f"s_mov_b32 m0, {m0}", [self.dma(sA if half == 0 else sB, vD4 + w, sOff, i) for i in range(4)]))
        return G

    def loader_tile(self, slot):
        a = self.a
        for m0, ds in self.tile_groups(slot):
            a(m0)
            a("s_nop 0")
            a(ds)
        a(self.tile_advance())

    def tile_off(self):
        return [f"s_add_u32 {sr(sOff)}, {sr(sG)}, {sr(sRot)}",
                f"s_and_b32 {sr(sOff)}, {sr(sOff)}, 15",
                f"s_and_b32 {sr(sT1)}, {sr(sG)}, 16",
                f"s_or_b32 {sr(sOff)}, {sr(sOff)}, {sr(sT1)}",
                f"s_lshl_b32 {sr(sOff)}, {sr(sOff)}, 14"]

    def tile_advance(self):
        return [f"s_add_u32 {sr(sG)}, {sr(sG)}, 1"] + self.tile_off()

    def q4_loads(self):
        return [f"buffer_load_dwordx4 {ar(aQ4 + 4 * c, 4)}, {vr(vQ4)}, {sr(sQS, 4)}, 0 offen offset:{64 * c}{self.nt}" for c in range(4)]

    def stamp_lines(self):
        return [f"s_memtime {sr(sTS, 2)}", f"s_memrealtime {sr(sTS + 2, 2)}", "s_waitcnt lgkmcnt(0)",
                f"v_mov_b32 {vr(vST)}, {sr(sTS)}", f"v_mov_b32 {vr(vST + 1)}, {sr(sTS + 2)}",
                f"buffer_store_dwordx2 {vr(vST, 2)}, {vr(vST + 2)}, {sr(sDbg, 4)}, {sr(sTS + 4)} offen",
                f"s_add_u32 {sr(sTS + 4)}, {sr(sTS + 4)}, 8"]

    def stamp(self):
        if self.o.stamps:
            self.a(self.stamp_lines())

    def schedule(self, NU, vs, ks, fat):
        o = self.o
        N = 32 * NU
        START = N - 8
        cap = [2] * N
        for s in vs + ks:
            cap[s] -= 1
        for s in fat:
            cap[s] += 1
        val = [[] for _ in range(N)]
        ops_exp = [(n, e) for n in range(NU) for e in range(16)]
        small = []
        ie = 0
        for t in range(N):
            s = (START + t) % N
            c = cap[s]
            ready = [x for x in small if x[0] <= t]
            can_exp = False
            if ie < len(ops_exp):
                n, e = ops_exp[ie]
                avail = 32 * n - 16 + 4 * (e >> 2) + 3 + 8 + o.elag
                can_exp = t >= avail
            while c > 0:
                if c >= 2 and can_exp and (len(ready) < 2 or c >= 3):
                    val[s].append(("exp", n, e))
                    small.append((t + 1, "add", n, e))
                    if e & 1:
                        small.append((t + 1, "cvt", n, e))
                    ie += 1
                    c -= 2
                    can_exp = False
                elif ready:
                    x = ready.pop(0)
                    small.remove(x)
                    val[s].append(x[1:])
                    if x[1] == "cvt":
                        dl = 32 * (x[2] + 1) + 8 - 2
                        if t > dl:
                            self.fail_t = dl
                            return None
                    c -= 1
                else:
                    break
        if ie < len(ops_exp) or small:
            self.fail_t = N - 1
            return None
        return val

    def loop_third(self, NU, slot, tag, drain=-1):
        o = self.o
        N = 32 * NU
        START = N - 8
        UB = UBS[NU]
        loader = NU == 4
        mf = []
        for n in range(NU):
            p = (n - 1) % NU
            q = (n + 1) % NU
            for f in range(16):
                mf.append(pv_mfma(p, UB[p], f))
            for x in range(16):
                mf.append(qk_mfma(q, vS + 16 * UB[q] + 4 * (x >> 2), x, vr(vNM + 4 * q, 4)))
        sal = [[] for _ in range(N)]
        mem = [[] for _ in range(N)]
        post = [[] for _ in range(N)]
        need = {}
        need2 = {}
        k0 = N - 48
        if loader:
            vs = [s for s in range(40) if s % 5 != 4 or s % 4 == 1][:32]
            ks = [k0 + 1 + 2 * x for x in range(16)]
            sched = [[] for _ in range(N)]
            for n in range(NU):
                for e in range(16):
                    s = (32 * n - 8 + 2 * e) % N
                    sched[s].append(("exp", n, e))
                    sched[s + 1].append(("add", n, e))
                    if e & 1:
                        sched[s + 1].append(("cvt", n, e))
        else:
            vs, ks = o.vslots, o.kslots
            sched = self.schedule(NU, vs, ks, o.fat)
            assert sched is not None, "schedule failed"
        val = [[] for _ in range(N)]
        for s in range(N):
            for kind, n, e in sorted(sched[s], key=lambda x: x[0] == "exp"):
                b = vS + 16 * UB[n]
                if kind == "exp":
                    val[s].append(f"v_exp_f32 {vr(b + e)}, {vr(b + e)}")
                elif kind == "add":
                    val[s].append(f"v_add_f32 {vr(vL + n)}, {vr(vL + n)}, {vr(b + e)}")
                else:
                    k = e >> 1
                    val[s].append(f"v_cvt_pk_bf16_f32 {vr(b + 8 * (k >> 2) + (k & 3))}, {vr(b + e - 1)}, {vr(b + e)}")
        assert len(vs) == 32 and len(ks) == 16
        for k, s in enumerate(vs):
            assert s >= (k >> 1)
            mem[s].append(v_read(k, slot))
        for f in range(16):
            need[32 + f] = ("V", 2 * f + 1)
        for x, s in enumerate(ks):
            assert k0 + x <= s < START
            mem[s].append(k_read(x, (slot + 1) % 3))
        for x in range(16):
            need[k0 + 32 + x] = ("K", x)
        bs = o.barslot
        assert bs > max(vs) + 6
        if drain >= 0:
            sal[bs - 1].append(f"s_waitcnt vmcnt({[32, 22, 63][drain]}) lgkmcnt(0)")
            sal[bs].append("s_barrier")
            pieces = list(range(64))[[0, 22, 43][drain]:[22, 43, 64][drain]]
            s = bs + 2
            for k, p in enumerate(pieces):
                w, u, i = p >> 4, (p >> 2) & 3, p & 3
                d = aDr + 4 * (k & 7)
                mem[s].insert(0, f"ds_read_b128 {ar(d, 4)}, {vr(vDr + (i & 1))} offset:{1024 * p}")
                s2 = s + 9
                need2[s2] = ("D", k & 7)
                sal[s2].append(f"s_movk_i32 {sr(sT0)}, {(16384 * w + 4096 * i) >> 1}" if False else f"s_mov_b32 {sr(sT0)}, {16384 * w + 4096 * i}")
                off = f" offset:{1024 * u}" if u else ""
                mem[s2].insert(0, f"buffer_store_dwordx4 {ar(d, 4)}, {vr(vLane16)}, {sr(sO, 4)}, {sr(sT0)} offen{off}{self.st}")
                s += 2
            assert s + 9 < START
        elif loader:
            for i, ln in enumerate([f"s_lshr_b32 {sr(sT0)}, {sr(sQn)}, 2",
                                    f"s_mul_i32 {sr(sT0)}, {sr(sT0)}, 12288",
                                    f"s_lshl_b32 {sr(sQoff)}, {sr(sQn)}, 10",
                                    f"s_add_u32 {sr(sQoff)}, {sr(sQoff)}, {sr(sT0)}",
                                    f"s_add_u32 {sr(sQn)}, {sr(sQn)}, 1",
                                    f"s_cmp_lt_u32 {sr(sJ)}, {sr(sStop)}",
                                    f"s_cselect_b32 {sr(sA + 2)}, {sr(sSize)}, 0",
                                    f"s_mov_b32 {sr(sB + 2)}, {sr(sA + 2)}"]):
                sal[10 + i].append(ln)
            sal[bs - 1].append("s_waitcnt vmcnt(32) lgkmcnt(0)")
            sal[bs].append("s_barrier")
            sal[bs + 1] += [f"s_cmp_ge_u32 {sr(sJ)}, {sr(sQstop)}", f"s_cbranch_scc1 L_noq{tag}"]
            for w in range(4):
                sal[bs + 1] += [f"s_add_u32 m0, {sr(sQoff)}, {QREG + 4096 * w}", "s_nop 0", self.dma(sQS, vD4 + w, sQoff, 0)]
            sal[bs + 1].append(f"L_noq{tag}:")
            s = bs + 3
            for m0, ds in self.tile_groups(slot):
                sal[s - 1].append(m0)
                for d in ds:
                    mem[s].insert(0, d)
                    s += o.dstep
            assert s - o.dstep < START - 4
            sal[START - 3].append(f"s_add_u32 {sr(sG)}, {sr(sG)}, 1")
            for i, ln in enumerate(self.tile_off()):
                sal[20 + i].append(ln)
        else:
            sal[bs - 1].append("s_waitcnt lgkmcnt(0)")
            sal[bs].append("s_barrier")
        if drain < 0:
            sal[START - 4].append(f"s_add_u32 {sr(sJ)}, {sr(sJ)}, 1")
            if loader and slot == 1:
                sal[START - 2].append(f"s_cmp_eq_u32 {sr(sJ)}, {sr(sStaged)}")
                post[START - 1].append("s_cbranch_scc1 L_drain")
            elif slot < 2:
                sal[START - 2].append(f"s_cmp_eq_u32 {sr(sJ)}, 16")
                post[START - 1].append(f"s_cbranch_scc1 L_tail{NU}")
            else:
                post[START - 1].append(f"s_branch L_loop{NU}_0")
        if o.slow and not loader:
            for i in range(o.slow):
                post[(i * N) // o.slow + 2].insert(0, "s_nop 3")
        if o.stamps > 1:
            post[70] += self.stamp_lines()
        order = [(START + i) % N for i in range(N)]
        body = []
        for s in order:
            body.append(mf[s])
            nxt = (s + 1) % N
            if nxt in need:
                body.append(("WAIT", need[nxt]))
            if s in need2:
                body.append(("WAIT", need2[s]))
            body += sal[s] + mem[s] + val[s] + post[s]

        def tagof(x):
            if x.startswith("ds_read_b128 a"):
                return ("D", (int(x.split("[")[1].split(":")[0]) - aDr) // 4)
            if x.startswith("ds_read_b128"):
                return ("K", (int(x.split("[")[1].split(":")[0]) - vK) // 4)
            return ("V", (int(x.split("[")[1].split(":")[0]) - aV) // 2)

        out = []
        done = set()
        for i, ln in enumerate(body):
            if isinstance(ln, tuple):
                if ln[1] in done:
                    continue
                cnt = young = nmf = 0
                j = i
                while True:
                    j = (j - 1) % len(body)
                    x = body[j]
                    if isinstance(x, tuple):
                        continue
                    if x.startswith("v_mfma"):
                        nmf += 1
                    if x.startswith("ds_"):
                        if tagof(x) == ln[1]:
                            break
                        cnt += 1
                        if nmf <= o.lat:
                            young += 1
                cnt = min(cnt, young, 15)
                out.append(f"s_waitcnt lgkmcnt({cnt})")
                j = i
                k = 0
                seen = set()
                for _ in range(len(body)):
                    j = (j - 1) % len(body)
                    x = body[j]
                    if isinstance(x, str) and x.startswith("ds_"):
                        k += 1
                        if k <= cnt:
                            seen.add(tagof(x))
                        elif tagof(x) not in seen:
                            done.add(tagof(x))
            else:
                if ln.startswith("ds_"):
                    done.discard(tagof(ln))
                out.append(ln)
        if o.abl:
            for key in o.abl.split(","):
                out = [x for x in out if not x.startswith(key)]
        else:
            check_hazards(out)
        check_scc(out)
        return out, [mf[s] for s in range(16)]

    def gen(self):
        o = self.o
        a = self.a
        x0, x1, x2 = vX, vX + 1, vX + 2

        a("""
        s_cmp_ge_u32 s2, 256
        s_cbranch_scc1 L_exit
        s_load_dwordx8 s[4:11], s[0:1], 0
        """)
        if o.pref:
            a(f"""
            s_getpc_b64 {sr(sT2, 2)}
            v_lshlrev_b32 {vr(vX)}, 7, v0
            v_add_u32 {vr(vX + 1)}, 0x8000, {vr(vX)}
            v_min_u32 {vr(vX + 1)}, L_exit-{NAME}_kernel-64, {vr(vX + 1)}
            global_load_dword v255, {vr(vX)}, {sr(sT2, 2)}
            global_load_dword v255, {vr(vX + 1)}, {sr(sT2, 2)}
            """)
        if o.remap == 0:
            a("s_mov_b32 s3, s2")
        elif o.remap == 1:
            a(f"""
            s_lshr_b32 s3, s2, 3
            s_and_b32 {sr(sT0)}, s2, 7
            s_lshl_b32 {sr(sT0)}, {sr(sT0)}, 5
            s_or_b32 s3, s3, {sr(sT0)}
            """)
        elif o.remap == 2:
            a(f"""
            s_lshr_b32 {sr(sT0)}, s2, 3
            s_and_b32 {sr(sT0)}, {sr(sT0)}, 7
            s_xor_b32 s3, s2, {sr(sT0)}
            """)
        elif o.remap == 3:
            a("s_xor_b32 s3, s2, 1")
        if o.stamps:
            a(f"""
            s_load_dwordx2 {sr(sDbg, 2)}, s[0:1], 40
            s_mov_b32 {sr(sDbg + 2)}, 0x100000
            s_mov_b32 {sr(sDbg + 3)}, 0x00020000
            s_mov_b32 {sr(sTS + 4)}, 0
            v_lshrrev_b32 {vr(vST + 2)}, 6, v0
            v_lshl_add_u32 {vr(vST + 2)}, s2, 2, {vr(vST + 2)}
            v_lshlrev_b32 {vr(vST + 2)}, 9, {vr(vST + 2)}
            """)
            self.stamp()
        a(f"""
        v_lshrrev_b32 {vr(x0)}, 6, v0
        v_and_b32 v0, 63, v0
        v_lshrrev_b32 {vr(x1)}, 4, v0
        v_readfirstlane_b32 {sr(sW)}, {vr(x0)}
        v_and_b32 {vr(x2)}, 15, v0
        v_lshlrev_b32 {vr(x0)}, 1, {vr(x1)}
        v_xor_b32 {vr(x2)}, {vr(x2)}, {vr(x0)}
        v_lshlrev_b32 {vr(x2)}, 4, {vr(x2)}
        v_lshl_or_b32 {vr(vD4)}, {vr(x1)}, 8, {vr(x2)}
        s_lshl_b32 {sr(sW4096)}, {sr(sW)}, 12
        s_lshr_b32 {sr(sT0)}, {sr(sW)}, 1
        s_mul_i32 {sr(sT0)}, {sr(sT0)}, 0x90
        s_and_b32 {sr(sT1)}, {sr(sW)}, 1
        s_lshl_b32 {sr(sT1)}, {sr(sT1)}, 7
        s_xor_b32 {sr(sT0)}, {sr(sT0)}, {sr(sT1)}
        s_or_b32 {sr(sT0)}, {sr(sT0)}, {sr(sW4096)}
        v_xor_b32 {vr(vDma)}, {sr(sT0)}, {vr(vD4)}
        s_lshl_b32 {sr(sT0)}, s3, 19
        s_mov_b32 {sr(sSize)}, {2 * 262144}
        s_mov_b32 {sr(sA + 3)}, 0x00020000
        s_mov_b32 {sr(sB + 3)}, 0x00020000
        s_mov_b32 {sr(sO + 3)}, 0x00020000
        s_mov_b32 {sr(sQS + 3)}, 0x00020000
        s_mov_b32 {sr(sO + 2)}, {QBYTES}
        s_mov_b32 {sr(sQS + 2)}, {QBYTES}
        s_mov_b32 {sr(sBad)}, 0
        s_mov_b32 {sr(sRedo)}, 0
        s_mov_b32 {sr(sHl)}, 0
        s_mov_b32 {sr(sPl)}, 0
        v_and_b32 {vr(x0)}, 15, v0
        v_lshlrev_b32 {vr(x0)}, 8, {vr(x0)}
        v_lshl_or_b32 {vr(x0)}, {vr(x1)}, 4, {vr(x0)}
        s_add_u32 {sr(sT1)}, {sr(sW4096)}, 65536
        v_add_u32 {vr(vQ4)}, {sr(sT1)}, {vr(x0)}
        s_waitcnt lgkmcnt(0)
        s_add_u32 {sr(sA)}, {sr(sK)}, {sr(sT0)}
        s_addc_u32 {sr(sA + 1)}, {sr(sK + 1)}, 0
        s_add_u32 {sr(sB)}, {sr(sV)}, {sr(sT0)}
        s_addc_u32 {sr(sB + 1)}, {sr(sV + 1)}, 0
        s_mov_b32 {sr(sO)}, {sr(sOUT)}
        s_mov_b32 {sr(sO + 1)}, {sr(sOUT + 1)}
        """)
        if o.stag:
            a(f"""
            s_lshr_b32 {sr(sT0)}, s2, 3
            s_and_b32 {sr(sT0)}, {sr(sT0)}, {o.stagm}
            """)
            a.label("L_stag")
            a(f"""
            s_cmp_eq_u32 {sr(sT0)}, 0
            s_cbranch_scc1 L_start
            s_sleep {o.stag}
            s_sub_u32 {sr(sT0)}, {sr(sT0)}, 1
            s_branch L_stag
            """)
        a.label("L_start")
        a(f"""
        s_lshl_b32 {sr(sT0)}, s3, 1
        s_add_u32 {sr(sT0)}, {sr(sT0)}, {sr(sHl)}
        s_mul_i32 {sr(sT0)}, {sr(sT0)}, {QBYTES}
        s_add_u32 {sr(sQS)}, {sr(sQ)}, {sr(sT0)}
        s_addc_u32 {sr(sQS + 1)}, {sr(sQ + 1)}, 0
        s_mov_b32 {sr(sPrev)}, 0
        s_lshl_b32 {sr(sG)}, {sr(sHl)}, 4
        s_lshr_b32 {sr(sRot)}, s2, {o.rotsh}
        s_mul_i32 {sr(sRot)}, {sr(sRot)}, {o.rotmul}
        s_mov_b32 {sr(sA + 2)}, {sr(sSize)}
        s_mov_b32 {sr(sB + 2)}, {sr(sSize)}
        s_mov_b32 {sr(sStaged)}, 0
        """)
        a(self.tile_off())
        for u in range(4):
            a(f"s_mov_b32 {sr(sQoff)}, {TILE * u}")
            a(f"s_add_u32 m0, {sr(sW4096)}, {QREG + TILE * u}")
            a("s_nop 0")
            for i in range(4):
                a(self.dma(sQS, vDma, sQoff, i))
        a(self.q4_loads())
        for half in (0, 1):
            a(f"s_add_u32 m0, {sr(sW4096)}, {half * VREG}")
            a("s_nop 0")
            for i in range(4):
                a(self.dma(sA if half == 0 else sB, vDma, sOff, i))
        a(self.tile_advance())
        a(f"""
        v_xor_b32 {vr(vD4 + 1)}, {0x1080}, {vr(vD4)}
        v_xor_b32 {vr(vD4 + 2)}, {0x2090}, {vr(vD4)}
        v_xor_b32 {vr(vD4 + 3)}, {0x3010}, {vr(vD4)}
        """)
        a(f"""
        v_and_b32 {vr(x0)}, 3, v0
        v_bfe_u32 {vr(x1)}, v0, 2, 2
        v_lshl_or_b32 {vr(x2)}, {vr(x1)}, 4, {vr(x0)}
        v_lshlrev_b32 {vr(vKg)}, 8, {vr(x2)}
        v_and_b32 {vr(x0)}, 7, v0
        v_lshlrev_b32 {vr(x0)}, 1, {vr(x0)}
        v_bfe_u32 {vr(x1)}, v0, 3, 1
        v_mul_u32_u24 {vr(x1)}, 9, {vr(x1)}
        v_xor_b32 {vr(x0)}, {vr(x0)}, {vr(x1)}
        v_lshrrev_b32 {vr(x1)}, 4, v0
        v_xor_b32 {vr(x0)}, {vr(x0)}, {vr(x1)}
        v_lshl_or_b32 {vr(vKg)}, {vr(x0)}, 4, {vr(vKg)}
        """)
        a(f"""
        v_bfe_u32 {vr(x0)}, v0, 2, 2
        v_lshrrev_b32 {vr(x1)}, 4, v0
        v_lshl_or_b32 {vr(x2)}, {vr(x1)}, 4, {vr(x0)}
        v_lshlrev_b32 {vr(vVA)}, 8, {vr(x2)}
        v_bfe_u32 {vr(x0)}, v0, 2, 3
        v_lshlrev_b32 {vr(x0)}, 1, {vr(x0)}
        v_lshrrev_b32 {vr(x1)}, 5, v0
        v_mul_u32_u24 {vr(x1)}, 9, {vr(x1)}
        v_xor_b32 {vr(x0)}, {vr(x0)}, {vr(x1)}
        v_bfe_u32 {vr(x1)}, v0, 1, 1
        v_xor_b32 {vr(x0)}, {vr(x0)}, {vr(x1)}
        v_lshl_or_b32 {vr(vVA)}, {vr(x0)}, 4, {vr(vVA)}
        v_and_b32 {vr(x1)}, 1, v0
        v_lshl_or_b32 {vr(vVA)}, {vr(x1)}, 3, {vr(vVA)}
        v_add_u32 {vr(vVA)}, {VREG}, {vr(vVA)}
        """)
        a(f"""
        v_and_b32 {vr(x0)}, 15, v0
        v_lshrrev_b32 {vr(x1)}, 4, v0
        v_xor_b32 {vr(x2)}, {vr(x0)}, {vr(x1)}
        v_lshlrev_b32 {vr(x2)}, 4, {vr(x2)}
        v_lshl_or_b32 {vr(vEr)}, {vr(x1)}, 8, {vr(x2)}
        v_and_b32 {vr(x2)}, 7, v0
        v_lshrrev_b32 {vr(vEw)}, 5, v0
        v_xor_b32 {vr(x2)}, {vr(x2)}, {vr(vEw)}
        v_lshlrev_b32 {vr(x2)}, 4, {vr(x2)}
        v_lshl_or_b32 {vr(vEw)}, {vr(x0)}, 8, {vr(x2)}
        v_and_b32 {vr(x1)}, 1, {vr(x1)}
        v_lshl_or_b32 {vr(vEw)}, {vr(x1)}, 3, {vr(vEw)}
        v_lshlrev_b32 {vr(vLane16)}, 4, v0
        s_mov_b32 {sr(sC)}, {CSCALE:#x}
        s_mov_b32 {sr(sC + 1)}, {CSCALE:#x}
        s_mov_b32 {sr(sLim)}, {LIMIT:#x}
        s_mov_b32 {sr(sMask)}, 0xffff0000
        s_lshl_b32 {sr(sT0)}, {sr(sW)}, 14
        s_add_u32 {sr(sT0)}, {sr(sT0)}, {QREG}
        """)
        for c in range(4):
            a(f"v_xor_b32 {vr(vKA + c)}, {c << 6}, {vr(vKg)}")
        for d in range(1, 8):
            a(f"v_xor_b32 {vr(vVA + d)}, {d << 5}, {vr(vVA)}")
        a(f"v_add_u32 {vr(vKg)}, {sr(sT0)}, {vr(vKg)}")
        for r in range(4):
            a(f"v_mov_b32 {vr(vZ + r)}, 0")
        a(self.q_addr())
        z = vr(vZ, 4)
        for i in range(10):
            a(f"{M32} {ar(16 * i, 16)}, {z}, {z}, 0")
        a("""
        s_waitcnt vmcnt(12)
        s_barrier
        """)
        self.stamp()
        a(self.q_reads())
        a(f"""
        s_cmp_lg_u32 {sr(sW)}, 3
        s_cbranch_scc1 L_pro
        """)
        self.loader_tile(1)
        a("s_branch L_pro")
        a.label("L_trans")
        self.stamp()
        self.epilogue_head()
        a(f"""
        s_cmp_eq_u32 {sr(sNext)}, 0
        s_cbranch_scc1 L_final
        """)
        self.epilogue(True)
        a.label("L_pro")
        self.stamp()
        self.prologue()
        self.stamp()
        a(f"""
        s_cmp_eq_u32 {sr(sW)}, 3
        s_cbranch_scc1 L_ent4
        s_cmp_eq_u32 {sr(sPrev)}, 0
        s_cbranch_scc0 L_loop5_1
        """)
        for NU in (5, 4):
            if NU == 4:
                a.label("L_ent4")
                a(f"""
                s_cmp_eq_u32 {sr(sPrev)}, 0
                s_cbranch_scc0 L_loop4_1
                """)
            a(".p2align 6")
            for slot in range(3):
                body, tail = self.loop_third(NU, slot, f"{NU}{slot}")
                a.label(f"L_loop{NU}_{slot}")
                a(body)
            if NU == 4:
                a.label("L_drain")
                for d in range(3):
                    body, tail = self.loop_third(NU, (2 + d) % 3, f"d{d}", d)
                    a(body)
            a.label(f"L_tail{NU}")
            self.stamp()
            qa = self.q_addr()
            qr = self.q_reads()
            for i in range(16):
                a(tail[i])
                if i == 0:
                    a(qa)
                elif i <= 8:
                    a(qr[2 * i - 2: 2 * i])
            if NU == 5:
                a("s_waitcnt vmcnt(0)")
            a(f"""
            s_mov_b32 {sr(sPrev)}, 1
            s_branch L_trans
            """)
        a.label("L_final")
        self.epilogue(False)
        if o.stamps:
            self.stamp()
            a("s_waitcnt vmcnt(0)")
            self.stamp()
        a(f"""
        s_lshl_b32 {sr(sT1)}, {sr(sW)}, 2
        s_add_u32 {sr(sT1)}, {sr(sT1)}, {VREG + TILE}
        v_mov_b32 {vr(x0)}, {sr(sBad)}
        v_mov_b32 {vr(x1)}, {sr(sT1)}
        ds_write_b32 {vr(x1)}, {vr(x0)}
        v_mov_b32 {vr(x1)}, {VREG + TILE}
        s_waitcnt lgkmcnt(0)
        s_barrier
        ds_read_b128 {vr(vK, 4)}, {vr(x1)}
        s_waitcnt lgkmcnt(0)
        v_or_b32 {vr(x0)}, {vr(vK)}, {vr(vK + 1)}
        v_or3_b32 {vr(x0)}, {vr(x0)}, {vr(vK + 2)}, {vr(vK + 3)}
        s_nop 1
        v_readfirstlane_b32 {sr(sBad)}, {vr(x0)}
        s_nop 3
        s_cmp_eq_u32 {sr(sBad)}, 0
        s_cbranch_scc1 L_exit
        s_waitcnt vmcnt(0)
        s_barrier
        s_and_b32 {sr(sT0)}, {sr(sBad)}, 1
        s_xor_b32 {sr(sHl)}, {sr(sT0)}, 1
        s_lshl_b32 {sr(sT0)}, 1, {sr(sHl)}
        s_andn2_b32 {sr(sBad)}, {sr(sBad)}, {sr(sT0)}
        s_mov_b32 {sr(sRedo)}, 1
        s_branch L_start
        """)
        a.label("L_exit")
        a("s_endpgm")

    def q_addr(self):
        return [f"v_xor_b32 {vr(vM + c)}, {c << 6}, {vr(vKg)}" for c in range(4)]

    def q_reads(self):
        L = []
        for u in range(4):
            for c in range(4):
                L.append(f"ds_read_b128 {vr(vQ + 16 * u + 4 * c, 4)}, {vr(vM + c)}" + (f" offset:{1024 * u}" if u else ""))
        return L

    def allreduce5(self, op, base, tmp):
        L = []
        for sw in ("v_permlane16_swap_b32", "v_permlane32_swap_b32"):
            for u in range(5):
                L.append(f"v_mov_b32 {vr(tmp + u)}, {vr(base + u)}")
            for u in range(5):
                L.append(f"{sw} {vr(base + u)}, {vr(tmp + u)}")
            for u in range(5):
                L.append(f"{op} {vr(base + u)}, {vr(base + u)}, {vr(tmp + u)}")
        return L

    def epilogue_head(self):
        a = self.a
        o = self.o
        inv = vNM
        a(self.allreduce5("v_add_f32", vL, vM))
        for u in range(5):
            a(f"v_rcp_f32 {vr(inv + 2 * u)}, {vr(vL + u)}")
        a(f"v_cmp_ngt_f32 {sr(sT2, 2)}, {sr(sLim)}, {vr(vL)}")
        for u in range(1, 5):
            a(f"v_cmp_ngt_f32 vcc, {sr(sLim)}, {vr(vL + u)}")
            a(f"s_or_b64 {sr(sT2, 2)}, {sr(sT2, 2)}, vcc")
        a(f"""
        s_cmp_lg_u64 {sr(sT2, 2)}, 0
        s_cselect_b32 {sr(sT0)}, 1, 0
        s_lshl_b32 {sr(sT0)}, {sr(sT0)}, {sr(sPl)}
        s_cmp_eq_u32 {sr(sRedo)}, 0
        s_cselect_b32 {sr(sT0)}, {sr(sT0)}, 0
        s_or_b32 {sr(sBad)}, {sr(sBad)}, {sr(sT0)}
        s_add_u32 {sr(sT1)}, {sr(sW4096)}, 65536
        """)
        if o.abl:
            a(f"s_mov_b32 {sr(sBad)}, 0")

    def set_o(self):
        self.a(f"""
        s_lshl_b32 {sr(sT0)}, s3, 1
        s_add_u32 {sr(sT0)}, {sr(sT0)}, {sr(sPl)}
        s_mul_i32 {sr(sT0)}, {sr(sT0)}, {QBYTES}
        s_add_u32 {sr(sO)}, {sr(sOUT)}, {sr(sT0)}
        s_addc_u32 {sr(sO + 1)}, {sr(sOUT + 1)}, 0
        """)

    def epilogue(self, mid):
        a = self.a
        o = self.o
        tag = "m" if mid else "f"
        inv = vNM
        wa = vNM + 10
        ra = vNM + 14
        cv = vS
        rb = vS + 16
        z = vr(vZ, 4)
        if not mid:
            a(f"""
            s_cmp_eq_u32 {sr(sStaged)}, 0
            s_cbranch_scc1 L_no4
            s_cmp_eq_u32 {sr(sW)}, 3
            s_cbranch_scc1 L_no4
            """)
            for i in range(4):
                off = f" offset:{1024 * i}" if i else ""
                a(f"buffer_store_dwordx4 {ar(aO4 + 4 * i, 4)}, {vr(vLane16)}, {sr(sO, 4)}, {sr(sT1)} offen{off}{self.st}")
            a.label("L_no4")
        self.set_o()
        a(f"s_lshl_b32 {sr(sEo)}, {sr(sW)}, 14")
        if mid:
            a(f"s_add_u32 {sr(sT0)}, {sr(sEo)}, {QREG}")
        else:
            a(f"""
            s_cmp_eq_u32 {sr(sStaged)}, 0
            s_cselect_b32 {sr(sT0)}, {QREG}, 0
            s_add_u32 {sr(sT0)}, {sr(sT0)}, {sr(sEo)}
            s_add_u32 {sr(sEo + 1)}, {sr(sEo)}, 4096
            s_add_u32 {sr(sEo + 2)}, {sr(sEo)}, 8192
            s_add_u32 {sr(sEo + 3)}, {sr(sEo)}, 12288
            """)
        a(f"v_add_u32 {vr(wa)}, {sr(sT0)}, {vr(vEw)}")
        a(f"v_add_u32 {vr(ra)}, {sr(sT0)}, {vr(vEr)}")
        for k in range(1, 4):
            a(f"v_xor_b32 {vr(wa + k)}, {k << 5}, {vr(wa)}")
        a(f"v_xor_b32 {vr(ra + 1)}, 64, {vr(ra)}")

        def store(u, i):
            if u < 4:
                off = f" offset:{1024 * u}" if u else ""
                so = sEo + i
            else:
                off = f" offset:{1024 * i}" if i else ""
                so = sT1
            if o.nost:
                return "s_nop 0"
            return f"buffer_store_dwordx4 {vr(rb + 16 * (u & 1) + 4 * i, 4)}, {vr(vLane16)}, {sr(sO, 4)}, {sr(so)} offen{off}{self.st}"

        def convert(u, eb, extra=None):
            for dt in range(8):
                tb = cv + 4 * (dt & 3)
                acc = aO + 32 * u + 4 * dt
                for r in range(4):
                    a(f"v_accvgpr_read_b32 {vr(tb + r)}, {ar(acc + r)}")
                for r in range(2):
                    a(f"v_pk_mul_f32 {vr(tb + 2 * r, 2)}, {vr(tb + 2 * r, 2)}, {vr(inv + 2 * u, 2)} op_sel_hi:[1,0]")
                for r in range(2):
                    a(f"v_cvt_pk_bf16_f32 {vr(tb + r)}, {vr(tb + 2 * r)}, {vr(tb + 2 * r + 1)}")
                if mid:
                    a(f"{M16} {ar(acc, 4)}, {z}, {z}, 0")
                if extra and dt == 3:
                    a("s_waitcnt lgkmcnt(3)")
                a(f"ds_write_b64 {vr(wa + (dt & 3))}, {vr(tb, 2)} offset:{eb + 128 * (dt >> 2)}")
                if extra and 3 <= dt < 7:
                    a(extra[dt - 3])

        if mid:
            a(f"""
            s_mov_b32 {sr(sStaged)}, 13
            s_cmp_eq_u32 {sr(sW)}, 3
            s_cbranch_scc0 L_m4
            v_add_u32 {vr(vDr)}, {QREG}, {vr(vEr)}
            v_xor_b32 {vr(vDr + 1)}, 64, {vr(vDr)}
            s_branch L_m03
            """)
            a.label("L_m4")
            convert(4, 0)
            for i in range(4):
                a(f"ds_read_b128 {ar(aO4 + 4 * i, 4)}, {vr(ra + (i & 1))} offset:{1024 * i}")
            a.label("L_m03")
            for u in range(4):
                convert(u, 4096 * u)
            return
        for u in range(5):
            if u == 4:
                a(f"""
                s_cmp_eq_u32 {sr(sW)}, 3
                s_cbranch_scc1 L_epi3
                """)
            eb = (u & 3) * 4096
            convert(u, eb, [store(u - 1, i) for i in range(4)] if u else None)
            for i in range(4):
                a(f"ds_read_b128 {vr(rb + 16 * (u & 1) + 4 * i, 4)}, {vr(ra + (i & 1))} offset:{eb + 1024 * i}")
        for i in range(4):
            a(f"s_waitcnt lgkmcnt({3 - i})")
            a(store(4, i))
        a("s_branch L_epidone")
        a.label("L_epi3")
        for i in range(4):
            a(f"s_waitcnt lgkmcnt({3 - i})")
            a(store(3, i))
        a.label("L_epidone")

    def prologue(self):
        a = self.a
        x0, x1 = vX, vX + 1
        a(f"""
        s_cmp_eq_u32 {sr(sPrev)}, 0
        s_cselect_b32 {sr(sPl)}, {sr(sHl)}, 1
        s_or_b32 {sr(sT0)}, {sr(sPl)}, {sr(sRedo)}
        s_xor_b32 {sr(sNext)}, {sr(sT0)}, 1
        s_mul_i32 {sr(sQstop)}, {sr(sNext)}, 15
        s_mul_i32 {sr(sStop)}, {sr(sNext)}, 3
        s_add_u32 {sr(sStop)}, {sr(sStop)}, 13
        s_add_u32 {sr(sQS)}, {sr(sQS)}, {QBYTES}
        s_addc_u32 {sr(sQS + 1)}, {sr(sQS + 1)}, 0
        s_mov_b32 {sr(sJ)}, 0
        s_mov_b32 {sr(sQn)}, 1
        s_waitcnt lgkmcnt(0)
        """)
        tq = vS

        def scale(d0, d1):
            for d in range(d0, d1, 2):
                t0 = tq + 4 * ((d >> 1) & 3)
                for u in range(2):
                    a(f"v_lshlrev_b32 {vr(t0 + 2 * u)}, 16, {vr(vQ + d + u)}")
                    a(f"v_and_b32 {vr(t0 + 2 * u + 1)}, {sr(sMask)}, {vr(vQ + d + u)}")
                for u in range(2):
                    a(f"v_pk_mul_f32 {vr(t0 + 2 * u, 2)}, {vr(t0 + 2 * u, 2)}, {sr(sC, 2)}")
                for u in range(2):
                    a(f"v_cvt_pk_bf16_f32 {vr(vQ + d + u)}, {vr(t0 + 2 * u)}, {vr(t0 + 2 * u + 1)}")

        scale(0, 64)
        a(f"""
        s_cmp_eq_u32 {sr(sW)}, 3
        s_cbranch_scc1 L_q4done
        s_cmp_eq_u32 {sr(sPrev)}, 0
        s_cbranch_scc0 L_q4ok
        s_waitcnt vmcnt(8)
        """)
        a.label("L_q4ok")
        for d in range(16):
            a(f"v_accvgpr_read_b32 {vr(vQ + 64 + d)}, {ar(aQ4 + d)}")
        scale(64, 80)
        a.label("L_q4done")
        for u in range(5):
            a(f"v_mov_b32 {vr(vM + u)}, {NEGINF:#x}")
        z = vr(vZ, 4)
        zl = [f"{M32} {ar(aV + 16 * i, 16)}, {z}, {z}, 0" for i in range(4)]
        a(f"""
        s_mov_b32 {sr(sT3)}, 0
        s_cmp_eq_u32 {sr(sPrev)}, 0
        s_cbranch_scc0 L_maxgo
        s_cmp_eq_u32 {sr(sW)}, 3
        s_waitcnt vmcnt(32)
        s_cbranch_scc1 L_t0w
        s_waitcnt vmcnt(0)
        """)
        a.label("L_t0w")
        a("s_barrier")
        a(f"""
        s_lshl_b32 {sr(sT3)}, {sr(sRedo)}, 6
        s_lshl_b32 {sr(sT2)}, {sr(sPl)}, 18
        v_and_b32 {vr(x0)}, 15, v0
        v_lshlrev_b32 {vr(x0)}, 8, {vr(x0)}
        v_lshrrev_b32 {vr(x1)}, 4, v0
        v_lshl_or_b32 {vr(x0)}, {vr(x1)}, 4, {vr(x0)}
        """)
        a.label("L_max")
        a(f"""
        s_cmp_eq_u32 {sr(sT3)}, 0
        s_cbranch_scc1 L_maxlds
        """)
        for c in range(4):
            a(f"buffer_load_dwordx4 {vr(vK + 4 * c, 4)}, {vr(x0)}, {sr(sA, 4)}, {sr(sT2)} offen offset:{64 * c}")
        a(f"""
        s_add_u32 {sr(sT2)}, {sr(sT2)}, 4096
        s_waitcnt vmcnt(0)
        s_branch L_maxgo
        """)
        a.label("L_maxlds")
        for x in range(16):
            a(k_read(x, 0))
        a("s_waitcnt lgkmcnt(12)")
        a.label("L_maxgo")
        mb = vS + 16
        for u in range(5):
            for c in range(4):
                a(qk_mfma(u, mb + 4 * u, c, "0"))
            if u >= 2:
                b = mb + 4 * (u - 2)
                a(f"v_max3_f32 {vr(vM + u - 2)}, {vr(vM + u - 2)}, {vr(b)}, {vr(b + 1)}")
                a(f"v_max3_f32 {vr(vM + u - 2)}, {vr(vM + u - 2)}, {vr(b + 2)}, {vr(b + 3)}")
        a(zl[0])
        a("s_nop 2")
        for u in (3, 4):
            b = mb + 4 * u
            a(f"v_max3_f32 {vr(vM + u)}, {vr(vM + u)}, {vr(b)}, {vr(b + 1)}")
            a(f"v_max3_f32 {vr(vM + u)}, {vr(vM + u)}, {vr(b + 2)}, {vr(b + 3)}")
        a(f"""
        s_sub_u32 {sr(sT3)}, {sr(sT3)}, 1
        s_cbranch_scc0 L_max
        """)
        rest = self.allreduce5("v_max_f32", vM, vS)
        k = 1
        for i, ln in enumerate(rest):
            if i % 8 == 0 and k < 4:
                a(zl[k])
                k += 1
            a(ln)
        for r in range(4):
            a(f"v_sub_f32 {vr(vNM + r)}, 0, {vr(vM)}")
        a("s_waitcnt lgkmcnt(0)")
        rest = []
        for u in range(1, 5):
            for r in range(4):
                rest.append(f"v_sub_f32 {vr(vNM + 4 * u + r)}, 0, {vr(vM + u)}")
        for u in range(5):
            rest.append(f"v_mov_b32 {vr(vL + u)}, 0")
        for r in (0, 1, 2, 3, 8, 9, 10, 11):
            rest.append(f"v_mov_b32 {vr(vS + 32 + r)}, 0")
        a(rest[:1])
        rest = rest[1:]
        for x in range(8):
            a(qk_mfma(0, vS + 4 * (x >> 2), x, vr(vNM, 4)))
            a(rest[4 * x: 4 * x + 4])
        a(f"""
        s_cmp_eq_u32 {sr(sPrev)}, 0
        s_cbranch_scc0 L_prodone
        s_cmp_eq_u32 {sr(sW)}, 3
        s_cbranch_scc1 L_pro3
        s_cmp_eq_u32 {sr(sNext)}, 0
        s_cbranch_scc1 L_prodone
        """)
        a(self.q4_loads())
        a("s_branch L_prodone")
        a.label("L_pro3")
        a(f"""
        s_cmp_eq_u32 {sr(sNext)}, 0
        s_cbranch_scc1 L_nonext
        s_mov_b32 {sr(sQoff)}, 0
        """)
        for w in range(4):
            a([f"s_mov_b32 m0, {QREG + 4096 * w}", "s_nop 0", self.dma(sQS, vD4 + w, sQoff, 0)])
        a.label("L_nonext")
        self.loader_tile(2)
        a.label("L_prodone")

    def text(self):
        return (HEADER + f""".amdgcn_target "amdgcn-amd-amdhsa--gfx950"
.text
.globl {NAME}_kernel
.p2align 8
.type {NAME}_kernel,@function
{NAME}_kernel:
""" + self.a.text() + f""".section .rodata,"a"
.p2align 6
.amdhsa_kernel {NAME}_kernel
  .amdhsa_next_free_vgpr 512
  .amdhsa_next_free_sgpr {NSGPR}
  .amdhsa_accum_offset 256
  .amdhsa_group_segment_fixed_size 0
  .amdhsa_kernarg_size 48
  .amdhsa_user_sgpr_count 2
  .amdhsa_user_sgpr_kernarg_segment_ptr 1
  .amdhsa_system_sgpr_workgroup_id_x 1
.end_amdhsa_kernel
""")


_REG = re.compile(r"\b([va])(?:(\d+)|\[(\d+):(\d+)\])")


def regs(op):
    m = _REG.fullmatch(op.strip())
    if not m:
        return set()
    lo = int(m.group(2) or m.group(3))
    hi = int(m.group(2) or m.group(4))
    return {(m.group(1), i) for i in range(lo, hi + 1)}


def check_scc(body):
    last = None
    for ln in body:
        mn = ln.split(" ")[0]
        if mn.startswith(("s_cselect", "s_cbranch_scc")):
            assert last is not None and last.startswith("s_cmp"), (last, ln)
        if mn.startswith(("s_cmp", "s_add", "s_sub", "s_and", "s_or", "s_xor", "s_lsh", "s_mul_hi")):
            last = mn


def check_hazards(body, cyclic=True):
    ins = [ln for ln in body if not ln.endswith(":")]
    seq = ins + ins if cyclic else ins
    info = []
    for ln in seq:
        mn, _, rest = ln.partition(" ")
        ops = [x.strip().split(" ")[0] for x in rest.split(",")] if rest else []
        info.append((mn, ops, ln))

    def states(i, j):
        n = 0
        for k in range(i + 1, j):
            mn, ops, _ = info[k]
            n += int(ops[0]) + 1 if mn == "s_nop" else 1
        return n

    N = len(seq)
    for i, (mn, ops, ln) in enumerate(info[: len(ins)]):
        if mn.startswith("v_mfma"):
            big = "32x32" in mn
            dAB, dC, dV, dW = (12, 10, 12, 7) if big else (8, 6, 8, 3)
            d = regs(ops[0])
            c = regs(ops[3])
            for j in range(i + 1, min(N, i + 20)):
                mn2, ops2, ln2 = info[j]
                if mn2.startswith("v_mfma"):
                    if (regs(ops2[1]) | regs(ops2[2])) & d and states(i, j) < dAB:
                        raise SystemExit(f"hazard mfma D->AB: {ln} -> {ln2}")
                    c2 = regs(ops2[3])
                    if c2 & d and c2 != d and states(i, j) < dC:
                        raise SystemExit(f"hazard mfma D->C overlap: {ln} -> {ln2}")
                elif mn2.startswith(("v_", "ds_", "buffer_")):
                    touched = set()
                    for o_ in ops2:
                        touched |= regs(o_)
                    if touched & d and states(i, j) < dV:
                        raise SystemExit(f"hazard mfma D->valu ({states(i, j)}): {ln} -> {ln2}")
                    if mn2.startswith("v_") and regs(ops2[0]) & c and states(i, j) < dW:
                        raise SystemExit(f"hazard mfma C war: {ln} -> {ln2}")
        elif mn.startswith("v_"):
            d = regs(ops[0])
            if "permlane" in mn:
                d |= regs(ops[1])
            for j in range(i + 1, min(N, i + 4)):
                mn2, ops2, ln2 = info[j]
                if mn2.startswith("v_mfma"):
                    if (regs(ops2[1]) | regs(ops2[2]) | regs(ops2[3])) & d and states(i, j) < 2:
                        raise SystemExit(f"hazard valu->mfma: {ln} -> {ln2}")
                elif "permlane" in mn2 and (regs(ops2[0]) | regs(ops2[1])) & d and states(i, j) < 2:
                    raise SystemExit(f"hazard valu->permlane: {ln} -> {ln2}")
                elif mn in ("v_exp_f32", "v_rcp_f32") and mn2.startswith("v_") and states(i, j) < 1:
                    src = set()
                    for o_ in ops2[1:]:
                        src |= regs(o_)
                    if src & d:
                        raise SystemExit(f"hazard trans->valu: {ln} -> {ln2}")
        elif mn.startswith("buffer_store_dwordx4"):
            d = regs(ops[0])
            for j in range(i + 1, min(N, i + 3)):
                mn2, ops2, ln2 = info[j]
                if mn2.startswith(("v_", "ds_read")) and regs(ops2[0]) & d and states(i, j) < 2:
                    raise SystemExit(f"hazard store data war: {ln} -> {ln2}")
        elif mn.startswith("s_") and ops and ops[0] == "m0":
            if i + 1 < N and info[i + 1][0].startswith("buffer_"):
                raise SystemExit(f"hazard m0: {ln}")


def ilist(s):
    return [int(x) for x in s.split(",")]


def main():
    p = argparse.ArgumentParser()
    p.add_argument("-o", default=f"cdna_kernels/{NAME}.s")
    p.add_argument("--nt", type=int, default=1)
    p.add_argument("--stmode", type=int, default=4)
    p.add_argument("--vslots", type=ilist, default=[1, 1, 4, 4, 7, 7, 10, 10, 13, 13, 16, 16, 19, 19, 22, 22, 25, 25, 28, 28,
                                                    30, 30, 31, 31, 32, 32, 33, 33, 34, 34, 35, 35])
    p.add_argument("--kslots", type=ilist, default=[120, 120, 124, 124, 128, 128, 132, 132, 136, 136, 140, 140, 144, 144, 148, 148])
    p.add_argument("--fat", type=ilist, default=[])
    p.add_argument("--elag", type=int, default=4)
    p.add_argument("--barslot", type=int, default=48)
    p.add_argument("--dstep", type=int, default=2)
    p.add_argument("--lat", type=int, default=7)
    p.add_argument("--slow", type=int, default=0)
    p.add_argument("--stag", type=int, default=0)
    p.add_argument("--stagm", type=int, default=3)
    p.add_argument("--pref", type=int, default=1)
    p.add_argument("--nost", type=int, default=0)
    p.add_argument("--remap", type=int, default=1)
    p.add_argument("--rotsh", type=int, default=0)
    p.add_argument("--rotmul", type=int, default=0)
    p.add_argument("--abl", default="")
    p.add_argument("--stamps", type=int, default=0)
    o = p.parse_args()
    g = Gen(o)
    if not o.fat:
        found = []
        busy = set(o.vslots) | set(o.kslots)
        while g.schedule(5, o.vslots, o.kslots, found) is None:
            ft = g.fail_t
            cand = [(152 + t) % 160 for t in range(max(1, ft - 27), ft)]
            cand = [c for c in cand if c not in busy and c not in found]
            best = max(cand, key=lambda c: min([abs(c - f) for f in found] + [9]) * 100 - cand.index(c))
            found.append(best)
            assert len(found) < 40
        o.fat = found
        print("fat slots:", found)
    g.gen()
    if not o.abl:
        check_hazards(g.a.lines, cyclic=False)
    open(o.o, "w").write(g.text())


if __name__ == "__main__":
    main()
```

```python
import argparse
import re
import struct

NAME = "standalone__mha_softmax__near_ridge"

HEADER = """; Kernarg layout for this problem (48 bytes, ptrs only, base s[0:1]):
; @launch grid=(256,1,1) block=(256,1,1) lds=163840
"""

QBYTES = 304 * 256
TILE = 16384
VREG = 3 * TILE
QREG = 6 * TILE


def f2u(x):
    return struct.unpack("<I", struct.pack("<f", x))[0]


CSCALE = f2u((128.0 ** -0.5) * 1.4426950408889634)
LIMIT = f2u(2.0 ** 40)
NEGINF = 0xFF800000

sQ, sK, sV, sOUT = 4, 6, 8, 10
sA, sB, sO, sQS = 12, 16, 20, 24
sOff, sQoff, sG, sStop = 28, 29, 30, 31
sRot = 34
sStaged = 35
sQstop, sSize = 32, 33
sW4096, sJ = 36, 37
sMask = 39
sEo = 40
sRelax, sBad, sRedo = 44, 45, 46
sW, sNext, sPrev = 47, 48, 49
sC = 50
sT0, sT1, sT2, sT3 = 54, 55, 56, 57
sQn = 58
sLim = 62
sHl = 63
sPl = 64
sDbg = 68
sTS = 72
NSGPR = 80

vDma = 1
vKA = 2
vVA = 6
vKg, vQ4, vEw, vEr, vLane16 = 14, 15, 16, 17, 18
vST = 19
VLS = [20, 24, 28, 248, 252]
vQ = 32
vNM = 112
vZ = 132
vS = 136
vK = 184
vM = vS + 40
vX = vS + 45
vD4 = vQ + 68
SU = 34
aO = 0
aV = 160
aQ4 = 224
aO4 = 240
vDr = vQ + 64
aDr = aO + 128

M16 = "v_mfma_f32_16x16x32_bf16"
M32 = "v_mfma_f32_32x32x16_bf16"
EROW = 272
UBS = {5: [0, 1, 0, 1, 2], 4: [0, 1, 0, 2]}


class Asm:
    def __init__(self):
        self.lines = []

    def __call__(self, s):
        if isinstance(s, list):
            for x in s:
                self(x)
            return
        for ln in s.strip("\n").split("\n"):
            ln = ln.strip()
            if ln:
                self.lines.append(ln)

    def label(self, n):
        self.lines.append(n + ":")

    def text(self):
        out = []
        for ln in self.lines:
            out.append(ln if ln.endswith(":") or ln.startswith(".") else "    " + ln)
        return "\n".join(out) + "\n"


def vr(b, n=1):
    return f"v{b}" if n == 1 else f"v[{b}:{b + n - 1}]"


def ar(b, n=1):
    return f"a{b}" if n == 1 else f"a[{b}:{b + n - 1}]"


def sr(b, n=1):
    return f"s{b}" if n == 1 else f"s[{b}:{b + n - 1}]"


def qk_mfma(u, dst, x, cinit):
    c = x & 3
    d = vr(dst, 4)
    return f"{M16} {d}, {vr(vK + 4 * x, 4)}, {vr(vQ + 16 * u + 4 * c, 4)}, {d if c else cinit}"


def pv_mfma(u, buf, f):
    dt, t = f >> 1, f & 1
    d = ar(aO + 32 * u + 4 * dt, 4)
    return f"{M16} {d}, {ar(aV + 4 * f, 4)}, {vr(vS + 16 * buf + 8 * t, 4)}, {d}"


def k_read(x, slot):
    off = TILE * slot + 1024 * (x >> 2)
    return f"ds_read_b128 {vr(vK + 4 * x, 4)}, {vr(vKA + (x & 3))}" + (f" offset:{off}" if off else "")


def v_read(k, slot):
    f, jj = k >> 1, k & 1
    dt, t = f >> 1, f & 1
    off = TILE * slot + 1024 * (2 * t + jj)
    return f"ds_read_b64_tr_b16 {ar(aV + 4 * f + 2 * jj, 2)}, {vr(vVA + dt)}" + (f" offset:{off}" if off else "")


class Gen:
    def __init__(self, opt):
        self.o = opt
        self.a = Asm()
        self.nt = {0: "", 1: " nt", 2: " sc1 nt", 3: " sc0 sc1 nt", 4: " sc0 nt", 5: " sc1", 6: " sc0 sc1"}[opt.nt]
        self.st = {0: "", 1: " nt", 2: " sc1", 3: " sc0 sc1", 4: " sc1 nt", 5: " sc0 sc1 nt"}[opt.stmode]

    def dma(self, srd, voff, soff, i):
        o = f" offset:{1024 * i}" if i else ""
        return f"buffer_load_dwordx4 {vr(voff)}, {sr(srd, 4)}, {sr(soff)} offen{o}{self.nt} lds"

    def tile_groups(self, slot):
        G = []
        for half in (0, 1):
            for w in range(4):
                m0 = half * VREG + slot * TILE + 4096 * w
                G.append((f"s_mov_b32 m0, {m0}", [self.dma(sA if half == 0 else sB, vD4 + w, sOff, i) for i in range(4)]))
        return G

    def loader_tile(self, slot):
        a = self.a
        for m0, ds in self.tile_groups(slot):
            a(m0)
            a("s_nop 0")
            a(ds)
        a(self.tile_advance())

    def tile_off(self):
        return [f"s_add_u32 {sr(sOff)}, {sr(sG)}, {sr(sRot)}",
                f"s_and_b32 {sr(sOff)}, {sr(sOff)}, 15",
                f"s_and_b32 {sr(sT1)}, {sr(sG)}, 16",
                f"s_or_b32 {sr(sOff)}, {sr(sOff)}, {sr(sT1)}",
                f"s_lshl_b32 {sr(sOff)}, {sr(sOff)}, 14"]

    def tile_advance(self):
        return [f"s_add_u32 {sr(sG)}, {sr(sG)}, 1"] + self.tile_off()

    def q4_loads(self):
        return [f"buffer_load_dwordx4 {ar(aQ4 + 4 * c, 4)}, {vr(vQ4)}, {sr(sQS, 4)}, 0 offen offset:{64 * c}{self.nt}" for c in range(4)]

    def stamp_lines(self):
        return [f"s_memtime {sr(sTS, 2)}", f"s_memrealtime {sr(sTS + 2, 2)}", "s_waitcnt lgkmcnt(0)",
                f"v_mov_b32 {vr(vST)}, {sr(sTS)}",
                f"buffer_store_dword {vr(vST)}, off, {sr(sDbg, 4)}, {sr(sTS + 4)}",
                f"v_mov_b32 {vr(vST)}, {sr(sTS + 2)}",
                f"buffer_store_dword {vr(vST)}, off, {sr(sDbg, 4)}, {sr(sTS + 4)} offset:4",
                f"s_add_u32 {sr(sTS + 4)}, {sr(sTS + 4)}, 8"]

    def stamp(self):
        if self.o.stamps:
            self.a(self.stamp_lines())

    def loop_third(self, NU, slot, tag, drain=-1):
        o = self.o
        N = SU * NU
        START = N - 8
        UB = UBS[NU]
        loader = NU == 4
        mf = []
        for n in range(NU):
            p = (n - 1) % NU
            q = (n + 1) % NU
            for f in range(16):
                mf.append(pv_mfma(p, UB[p], f))
            for t in range(2):
                d = vr(VLS[p], 4)
                mf.append(f"{M16} {d}, {vr(vZ, 4)}, {vr(vS + 16 * UB[p] + 8 * t, 4)}, {d}")
            for x in range(16):
                mf.append(qk_mfma(q, vS + 16 * UB[q] + 4 * (x >> 2), x, vr(vNM + 4 * q, 4)))
        sal = [[] for _ in range(N)]
        mem = [[] for _ in range(N)]
        post = [[] for _ in range(N)]
        val = [[] for _ in range(N)]
        need = {}
        need2 = {}
        k0 = N - SU - 16
        cap = [2] * N
        for n in range(NU):
            b = vS + 16 * UB[n]
            for e in range(16):
                s = (SU * n - 6 + 2 * e) % N
                val[s].append(f"v_exp_f32 {vr(b + e)}, {vr(b + e)}")
                cap[s] -= 2
                if e & 1:
                    k = e >> 1
                    val[s + 1].append(f"v_cvt_pk_bf16_f32 {vr(b + 8 * (k >> 2) + (k & 3))}, {vr(b + e - 1)}, {vr(b + e)}")
                    cap[s + 1] -= 1
        vs = []
        s = 0
        for k in range(32):
            while cap[s] <= 0 or s < (k >> 1):
                s += 1
            assert s <= SU + (k >> 1) - o.lat, (k, s)
            vs.append(s)
            cap[s] -= 1
            mem[s].append(v_read(k, slot))
        for f in range(16):
            need[SU + f] = ("V", 2 * f + 1)
        s = k0
        for x in range(16):
            while cap[s] <= 0 or s < k0 + 2 * x:
                s += 1
            assert s < START and s <= k0 + SU + x - o.lat
            cap[s] -= 1
            mem[s].append(k_read(x, (slot + 1) % 3))
        for x in range(16):
            need[k0 + SU + x] = ("K", x)
        bs = o.barslot
        assert bs > max(vs) + 6
        if drain >= 0:
            sal[bs - 1].append(f"s_waitcnt vmcnt({[32, 22, 63][drain]}) lgkmcnt(0)")
            sal[bs].append("s_barrier")
            pieces = list(range(64))[[0, 22, 43][drain]:[22, 43, 64][drain]]
            s = bs + 2
            for k, p in enumerate(pieces):
                w, u, i = p >> 4, (p >> 2) & 3, p & 3
                d = aDr + 4 * (k & 7)
                mem[s].insert(0, f"ds_read_b128 {ar(d, 4)}, {vr(vDr + (i & 1))} offset:{1024 * p}")
                s2 = s + 9
                need2[s2] = ("D", k & 7)
                sal[s2].append(f"s_movk_i32 {sr(sT0)}, {(16384 * w + 4096 * i) >> 1}" if False else f"s_mov_b32 {sr(sT0)}, {16384 * w + 4096 * i}")
                off = f" offset:{1024 * u}" if u else ""
                mem[s2].insert(0, f"buffer_store_dwordx4 {ar(d, 4)}, {vr(vLane16)}, {sr(sO, 4)}, {sr(sT0)} offen{off}{self.st}")
                s += 2
            assert s + 9 < START
        elif loader:
            for i, ln in enumerate([f"s_lshr_b32 {sr(sT0)}, {sr(sQn)}, 2",
                                    f"s_mul_i32 {sr(sT0)}, {sr(sT0)}, 12288",
                                    f"s_lshl_b32 {sr(sQoff)}, {sr(sQn)}, 10",
                                    f"s_add_u32 {sr(sQoff)}, {sr(sQoff)}, {sr(sT0)}",
                                    f"s_add_u32 {sr(sQn)}, {sr(sQn)}, {o.qrate}",
                                    f"s_cmp_lt_u32 {sr(sJ)}, {sr(sStop)}",
                                    f"s_cselect_b32 {sr(sA + 2)}, {sr(sSize)}, 0",
                                    f"s_mov_b32 {sr(sB + 2)}, {sr(sA + 2)}"]):
                sal[10 + i].append(ln)
            sal[bs - 1].append("s_waitcnt vmcnt(32) lgkmcnt(0)")
            sal[bs].append("s_barrier")
            sal[bs + 1] += [f"s_cmp_ge_u32 {sr(sJ)}, {sr(sQstop)}", f"s_cbranch_scc1 L_noq{tag}"]
            for rep in range((o.qrate + 3) // 4):
                if rep:
                    sal[bs + 1].append(f"s_add_u32 {sr(sQoff)}, {sr(sQoff)}, {TILE}")
                for w in range(4):
                    sal[bs + 1] += [f"s_add_u32 m0, {sr(sQoff)}, {QREG + 4096 * w}", "s_nop 0"]
                    sal[bs + 1] += [self.dma(sQS, vD4 + w, sQoff, i) for i in range(min(o.qrate, 4))]
            sal[bs + 1].append(f"L_noq{tag}:")
            s = bs + 3
            for m0, ds in self.tile_groups(slot):
                sal[s - 1].append(m0)
                for d in ds:
                    mem[s].insert(0, d)
                    s += o.dstep
            assert s - o.dstep < START - 4
            sal[START - 3].append(f"s_add_u32 {sr(sG)}, {sr(sG)}, 1")
            for i, ln in enumerate(self.tile_off()):
                sal[20 + i].append(ln)
        else:
            sal[bs - 1].append("s_waitcnt lgkmcnt(0)")
            sal[bs].append("s_barrier")
        if drain < 0:
            sal[START - 4].append(f"s_add_u32 {sr(sJ)}, {sr(sJ)}, 1")
            if loader and slot == 1:
                sal[START - 2].append(f"s_cmp_eq_u32 {sr(sJ)}, {sr(sStaged)}")
                post[START - 1].append("s_cbranch_scc1 L_drain")
            elif slot < 2:
                sal[START - 2].append(f"s_cmp_eq_u32 {sr(sJ)}, 16")
                post[START - 1].append(f"s_cbranch_scc1 L_tail{NU}")
            else:
                post[START - 1].append(f"s_branch L_loop{NU}_0")
        if o.slow and not loader:
            for i in range(o.slow):
                post[(i * N) // o.slow + 2].insert(0, "s_nop 3")
        if o.stamps > 1:
            post[70] += self.stamp_lines()
        order = [(START + i) % N for i in range(N)]
        body = []
        for s in order:
            body.append(mf[s])
            nxt = (s + 1) % N
            if nxt in need:
                body.append(("WAIT", need[nxt]))
            if s in need2:
                body.append(("WAIT", need2[s]))
            body += sal[s] + mem[s] + val[s] + post[s]

        def tagof(x):
            if x.startswith("ds_read_b128 a"):
                return ("D", (int(x.split("[")[1].split(":")[0]) - aDr) // 4)
            if x.startswith("ds_read_b128"):
                return ("K", (int(x.split("[")[1].split(":")[0]) - vK) // 4)
            return ("V", (int(x.split("[")[1].split(":")[0]) - aV) // 2)

        out = []
        done = set()
        for i, ln in enumerate(body):
            if isinstance(ln, tuple):
                if ln[1] in done:
                    continue
                cnt = young = nmf = 0
                j = i
                while True:
                    j = (j - 1) % len(body)
                    x = body[j]
                    if isinstance(x, tuple):
                        continue
                    if x.startswith("v_mfma"):
                        nmf += 1
                    if x.startswith("ds_"):
                        if tagof(x) == ln[1]:
                            break
                        cnt += 1
                        if nmf <= o.lat:
                            young += 1
                cnt = min(cnt, young, 15)
                out.append(f"s_waitcnt lgkmcnt({cnt})")
                j = i
                k = 0
                seen = set()
                for _ in range(len(body)):
                    j = (j - 1) % len(body)
                    x = body[j]
                    if isinstance(x, str) and x.startswith("ds_"):
                        k += 1
                        if k <= cnt:
                            seen.add(tagof(x))
                        elif tagof(x) not in seen:
                            done.add(tagof(x))
            else:
                if ln.startswith("ds_"):
                    done.discard(tagof(ln))
                out.append(ln)
        if o.abl:
            for key in (o.abl.split("|") if "|" in o.abl else o.abl.split(",")):
                out = [x for x in out if not x.startswith(key)]
        else:
            check_hazards(out)
        check_scc(out)
        return out, [mf[s] for s in range(18)]

    def gen(self):
        o = self.o
        a = self.a
        x0, x1, x2 = vX, vX + 1, vX + 2

        a("""
        s_cmp_ge_u32 s2, 256
        s_cbranch_scc1 L_exit
        s_load_dwordx8 s[4:11], s[0:1], 0
        """)
        if o.pref:
            a(f"""
            s_getpc_b64 {sr(sT2, 2)}
            v_lshlrev_b32 {vr(vX)}, 7, v0
            v_add_u32 {vr(vX + 1)}, 0x8000, {vr(vX)}
            v_min_u32 {vr(vX + 1)}, L_exit-{NAME}_kernel-64, {vr(vX + 1)}
            global_load_dword {vr(vK)}, {vr(vX)}, {sr(sT2, 2)}
            global_load_dword {vr(vK)}, {vr(vX + 1)}, {sr(sT2, 2)}
            """)
        if o.remap == 0:
            a("s_mov_b32 s3, s2")
        elif o.remap == 1:
            a(f"""
            s_lshr_b32 s3, s2, 3
            s_and_b32 {sr(sT0)}, s2, 7
            s_lshl_b32 {sr(sT0)}, {sr(sT0)}, 5
            s_or_b32 s3, s3, {sr(sT0)}
            """)
        elif o.remap == 2:
            a(f"""
            s_lshr_b32 {sr(sT0)}, s2, 3
            s_and_b32 {sr(sT0)}, {sr(sT0)}, 7
            s_xor_b32 s3, s2, {sr(sT0)}
            """)
        elif o.remap == 3:
            a("s_xor_b32 s3, s2, 1")
        if o.stamps:
            a(f"""
            s_load_dwordx2 {sr(sDbg, 2)}, s[0:1], 40
            s_mov_b32 {sr(sDbg + 2)}, 0x100000
            s_mov_b32 {sr(sDbg + 3)}, 0x00020000
            v_lshrrev_b32 {vr(vST)}, 6, v0
            v_lshl_add_u32 {vr(vST)}, s2, 2, {vr(vST)}
            v_lshlrev_b32 {vr(vST)}, 9, {vr(vST)}
            s_nop 0
            v_readfirstlane_b32 {sr(sTS + 4)}, {vr(vST)}
            """)
            self.stamp()
        a(f"""
        v_lshrrev_b32 {vr(x0)}, 6, v0
        v_and_b32 v0, 63, v0
        v_lshrrev_b32 {vr(x1)}, 4, v0
        v_readfirstlane_b32 {sr(sW)}, {vr(x0)}
        v_and_b32 {vr(x2)}, 15, v0
        v_lshlrev_b32 {vr(x0)}, 1, {vr(x1)}
        v_xor_b32 {vr(x2)}, {vr(x2)}, {vr(x0)}
        v_lshlrev_b32 {vr(x2)}, 4, {vr(x2)}
        v_lshl_or_b32 {vr(vD4)}, {vr(x1)}, 8, {vr(x2)}
        s_lshl_b32 {sr(sW4096)}, {sr(sW)}, 12
        s_lshr_b32 {sr(sT0)}, {sr(sW)}, 1
        s_mul_i32 {sr(sT0)}, {sr(sT0)}, 0x90
        s_and_b32 {sr(sT1)}, {sr(sW)}, 1
        s_lshl_b32 {sr(sT1)}, {sr(sT1)}, 7
        s_xor_b32 {sr(sT0)}, {sr(sT0)}, {sr(sT1)}
        s_or_b32 {sr(sT0)}, {sr(sT0)}, {sr(sW4096)}
        v_xor_b32 {vr(vDma)}, {sr(sT0)}, {vr(vD4)}
        s_lshl_b32 {sr(sT0)}, s3, 19
        s_mov_b32 {sr(sSize)}, {2 * 262144}
        s_mov_b32 {sr(sA + 3)}, 0x00020000
        s_mov_b32 {sr(sB + 3)}, 0x00020000
        s_mov_b32 {sr(sO + 3)}, 0x00020000
        s_mov_b32 {sr(sQS + 3)}, 0x00020000
        s_mov_b32 {sr(sO + 2)}, {QBYTES}
        s_mov_b32 {sr(sQS + 2)}, {QBYTES}
        s_mov_b32 {sr(sBad)}, 0
        s_mov_b32 {sr(sRedo)}, 0
        s_mov_b32 {sr(sHl)}, 0
        s_mov_b32 {sr(sPl)}, 0
        v_and_b32 {vr(x0)}, 15, v0
        v_lshlrev_b32 {vr(x0)}, 8, {vr(x0)}
        v_lshl_or_b32 {vr(x0)}, {vr(x1)}, 4, {vr(x0)}
        s_add_u32 {sr(sT1)}, {sr(sW4096)}, 65536
        v_add_u32 {vr(vQ4)}, {sr(sT1)}, {vr(x0)}
        s_waitcnt lgkmcnt(0)
        s_add_u32 {sr(sA)}, {sr(sK)}, {sr(sT0)}
        s_addc_u32 {sr(sA + 1)}, {sr(sK + 1)}, 0
        s_add_u32 {sr(sB)}, {sr(sV)}, {sr(sT0)}
        s_addc_u32 {sr(sB + 1)}, {sr(sV + 1)}, 0
        s_mov_b32 {sr(sO)}, {sr(sOUT)}
        s_mov_b32 {sr(sO + 1)}, {sr(sOUT + 1)}
        """)
        if o.stag:
            a(f"""
            s_lshr_b32 {sr(sT0)}, s2, 3
            s_and_b32 {sr(sT0)}, {sr(sT0)}, {o.stagm}
            """)
            a.label("L_stag")
            a(f"""
            s_cmp_eq_u32 {sr(sT0)}, 0
            s_cbranch_scc1 L_start
            s_sleep {o.stag}
            s_sub_u32 {sr(sT0)}, {sr(sT0)}, 1
            s_branch L_stag
            """)
        a.label("L_start")
        a(f"""
        s_lshl_b32 {sr(sT0)}, s3, 1
        s_add_u32 {sr(sT0)}, {sr(sT0)}, {sr(sHl)}
        s_mul_i32 {sr(sT0)}, {sr(sT0)}, {QBYTES}
        s_add_u32 {sr(sQS)}, {sr(sQ)}, {sr(sT0)}
        s_addc_u32 {sr(sQS + 1)}, {sr(sQ + 1)}, 0
        s_mov_b32 {sr(sPrev)}, 0
        s_lshl_b32 {sr(sG)}, {sr(sHl)}, 4
        s_lshr_b32 {sr(sRot)}, s2, {o.rotsh}
        s_mul_i32 {sr(sRot)}, {sr(sRot)}, {o.rotmul}
        s_mov_b32 {sr(sA + 2)}, {sr(sSize)}
        s_mov_b32 {sr(sB + 2)}, {sr(sSize)}
        s_mov_b32 {sr(sStaged)}, 0
        """)
        a(self.tile_off())
        for u in range(4):
            a(f"s_mov_b32 {sr(sQoff)}, {TILE * u}")
            a(f"s_add_u32 m0, {sr(sW4096)}, {QREG + TILE * u}")
            a("s_nop 0")
            for i in range(4):
                a(self.dma(sQS, vDma, sQoff, i))
        a(self.q4_loads())
        for half in (0, 1):
            a(f"s_add_u32 m0, {sr(sW4096)}, {half * VREG}")
            a("s_nop 0")
            for i in range(4):
                a(self.dma(sA if half == 0 else sB, vDma, sOff, i))
        a(self.tile_advance())
        a(f"""
        v_xor_b32 {vr(vD4 + 1)}, {0x1080}, {vr(vD4)}
        v_xor_b32 {vr(vD4 + 2)}, {0x2090}, {vr(vD4)}
        v_xor_b32 {vr(vD4 + 3)}, {0x3010}, {vr(vD4)}
        """)
        a(f"""
        v_and_b32 {vr(x0)}, 3, v0
        v_bfe_u32 {vr(x1)}, v0, 2, 2
        v_lshl_or_b32 {vr(x2)}, {vr(x1)}, 4, {vr(x0)}
        v_lshlrev_b32 {vr(vKg)}, 8, {vr(x2)}
        v_and_b32 {vr(x0)}, 7, v0
        v_lshlrev_b32 {vr(x0)}, 1, {vr(x0)}
        v_bfe_u32 {vr(x1)}, v0, 3, 1
        v_mul_u32_u24 {vr(x1)}, 9, {vr(x1)}
        v_xor_b32 {vr(x0)}, {vr(x0)}, {vr(x1)}
        v_lshrrev_b32 {vr(x1)}, 4, v0
        v_xor_b32 {vr(x0)}, {vr(x0)}, {vr(x1)}
        v_lshl_or_b32 {vr(vKg)}, {vr(x0)}, 4, {vr(vKg)}
        """)
        a(f"""
        v_bfe_u32 {vr(x0)}, v0, 2, 2
        v_lshrrev_b32 {vr(x1)}, 4, v0
        v_lshl_or_b32 {vr(x2)}, {vr(x1)}, 4, {vr(x0)}
        v_lshlrev_b32 {vr(vVA)}, 8, {vr(x2)}
        v_bfe_u32 {vr(x0)}, v0, 2, 3
        v_lshlrev_b32 {vr(x0)}, 1, {vr(x0)}
        v_lshrrev_b32 {vr(x1)}, 5, v0
        v_mul_u32_u24 {vr(x1)}, 9, {vr(x1)}
        v_xor_b32 {vr(x0)}, {vr(x0)}, {vr(x1)}
        v_bfe_u32 {vr(x1)}, v0, 1, 1
        v_xor_b32 {vr(x0)}, {vr(x0)}, {vr(x1)}
        v_lshl_or_b32 {vr(vVA)}, {vr(x0)}, 4, {vr(vVA)}
        v_and_b32 {vr(x1)}, 1, v0
        v_lshl_or_b32 {vr(vVA)}, {vr(x1)}, 3, {vr(vVA)}
        v_add_u32 {vr(vVA)}, {VREG}, {vr(vVA)}
        """)
        a(f"""
        v_and_b32 {vr(x0)}, 15, v0
        v_lshrrev_b32 {vr(x1)}, 4, v0
        v_xor_b32 {vr(x2)}, {vr(x0)}, {vr(x1)}
        v_lshlrev_b32 {vr(x2)}, 4, {vr(x2)}
        v_lshl_or_b32 {vr(vEr)}, {vr(x1)}, 8, {vr(x2)}
        v_and_b32 {vr(x2)}, 7, v0
        v_lshrrev_b32 {vr(vEw)}, 5, v0
        v_xor_b32 {vr(x2)}, {vr(x2)}, {vr(vEw)}
        v_lshlrev_b32 {vr(x2)}, 4, {vr(x2)}
        v_lshl_or_b32 {vr(vEw)}, {vr(x0)}, 8, {vr(x2)}
        v_and_b32 {vr(x1)}, 1, {vr(x1)}
        v_lshl_or_b32 {vr(vEw)}, {vr(x1)}, 3, {vr(vEw)}
        v_lshlrev_b32 {vr(vLane16)}, 4, v0
        s_mov_b32 {sr(sC)}, {CSCALE:#x}
        s_mov_b32 {sr(sC + 1)}, {CSCALE:#x}
        s_mov_b32 {sr(sLim)}, {LIMIT:#x}
        s_mov_b32 {sr(sMask)}, 0xffff0000
        s_lshl_b32 {sr(sT0)}, {sr(sW)}, 14
        s_add_u32 {sr(sT0)}, {sr(sT0)}, {QREG}
        """)
        for c in range(4):
            a(f"v_xor_b32 {vr(vKA + c)}, {c << 6}, {vr(vKg)}")
        for d in range(1, 8):
            a(f"v_xor_b32 {vr(vVA + d)}, {d << 5}, {vr(vVA)}")
        a(f"v_add_u32 {vr(vKg)}, {sr(sT0)}, {vr(vKg)}")
        for r in range(4):
            a(f"v_mov_b32 {vr(vZ + r)}, 0")
        a(self.q_addr())
        z = vr(vZ, 4)
        for i in range(10):
            a(f"{M32} {ar(16 * i, 16)}, {z}, {z}, 0")
        a("""
        s_waitcnt vmcnt(12)
        s_barrier
        """)
        self.stamp()
        a(self.q_reads())
        a(f"""
        s_cmp_lg_u32 {sr(sW)}, 3
        s_cbranch_scc1 L_pro
        """)
        self.loader_tile(1)
        a("s_branch L_pro")
        a.label("L_trans")
        self.stamp()
        self.epilogue_head()
        a(f"""
        s_cmp_eq_u32 {sr(sNext)}, 0
        s_cbranch_scc1 L_final
        """)
        self.epilogue(True)
        a.label("L_pro")
        self.stamp()
        self.prologue()
        self.stamp()
        a(f"""
        s_cmp_eq_u32 {sr(sW)}, 3
        s_cbranch_scc1 L_ent4
        s_cmp_eq_u32 {sr(sPrev)}, 0
        s_cbranch_scc0 L_loop5_1
        """)
        for NU in (5, 4):
            if NU == 4:
                a.label("L_ent4")
                a(f"""
                s_cmp_eq_u32 {sr(sPrev)}, 0
                s_cbranch_scc0 L_loop4_1
                """)
            a(".p2align 6")
            for slot in range(3):
                body, tail = self.loop_third(NU, slot, f"{NU}{slot}")
                a.label(f"L_loop{NU}_{slot}")
                a(body)
            if NU == 4:
                a.label("L_drain")
                for d in range(3):
                    body, tail = self.loop_third(NU, (2 + d) % 3, f"d{d}", d)
                    a(body)
            a.label(f"L_tail{NU}")
            self.stamp()
            qa = self.q_addr()
            qr = self.q_reads()
            for i in range(18):
                a(tail[i])
                if i == 0:
                    a(qa)
                elif i <= 8:
                    a(qr[2 * i - 2: 2 * i])
            if NU == 5:
                a("s_waitcnt vmcnt(0)")
            a(f"""
            s_mov_b32 {sr(sPrev)}, 1
            s_branch L_trans
            """)
        a.label("L_final")
        self.epilogue(False)
        if o.stamps:
            self.stamp()
            a("s_waitcnt vmcnt(0)")
            self.stamp()
        a(f"""
        s_lshl_b32 {sr(sT1)}, {sr(sW)}, 2
        s_add_u32 {sr(sT1)}, {sr(sT1)}, {VREG + TILE}
        v_mov_b32 {vr(x0)}, {sr(sBad)}
        v_mov_b32 {vr(x1)}, {sr(sT1)}
        ds_write_b32 {vr(x1)}, {vr(x0)}
        v_mov_b32 {vr(x1)}, {VREG + TILE}
        s_waitcnt lgkmcnt(0)
        s_barrier
        ds_read_b128 {vr(vK, 4)}, {vr(x1)}
        s_waitcnt lgkmcnt(0)
        v_or_b32 {vr(x0)}, {vr(vK)}, {vr(vK + 1)}
        v_or3_b32 {vr(x0)}, {vr(x0)}, {vr(vK + 2)}, {vr(vK + 3)}
        s_nop 1
        v_readfirstlane_b32 {sr(sBad)}, {vr(x0)}
        s_nop 3
        s_cmp_eq_u32 {sr(sBad)}, 0
        s_cbranch_scc1 L_exit
        s_waitcnt vmcnt(0)
        s_barrier
        s_and_b32 {sr(sT0)}, {sr(sBad)}, 1
        s_xor_b32 {sr(sHl)}, {sr(sT0)}, 1
        s_lshl_b32 {sr(sT0)}, 1, {sr(sHl)}
        s_andn2_b32 {sr(sBad)}, {sr(sBad)}, {sr(sT0)}
        s_mov_b32 {sr(sRedo)}, 1
        s_branch L_start
        """)
        a.label("L_exit")
        a("s_endpgm")

    def q_addr(self):
        return [f"v_xor_b32 {vr(vS + 44 + c)}, {c << 6}, {vr(vKg)}" for c in range(4)]

    def q_reads(self):
        L = []
        for u in range(4):
            for c in range(4):
                L.append(f"ds_read_b128 {vr(vQ + 16 * u + 4 * c, 4)}, {vr(vS + 44 + c)}" + (f" offset:{1024 * u}" if u else ""))
        return L

    def allreduce5(self, op, base, tmp):
        L = []
        for sw in ("v_permlane16_swap_b32", "v_permlane32_swap_b32"):
            for u in range(5):
                L.append(f"v_mov_b32 {vr(tmp + u)}, {vr(base + u)}")
            for u in range(5):
                L.append(f"{sw} {vr(base + u)}, {vr(tmp + u)}")
            for u in range(5):
                L.append(f"{op} {vr(base + u)}, {vr(base + u)}, {vr(tmp + u)}")
        return L

    def epilogue_head(self):
        a = self.a
        o = self.o
        inv = vNM
        for r in range(4):
            a(f"v_mov_b32 {vr(vZ + r)}, 0")
        a("s_nop 3")
        for u in range(5):
            a(f"v_rcp_f32 {vr(inv + 2 * u)}, {vr(VLS[u])}")
        a(f"v_cmp_ngt_f32 {sr(sT2, 2)}, {sr(sLim)}, {vr(VLS[0])}")
        for u in range(1, 5):
            a(f"v_cmp_ngt_f32 vcc, {sr(sLim)}, {vr(VLS[u])}")
            a(f"s_or_b64 {sr(sT2, 2)}, {sr(sT2, 2)}, vcc")
        a(f"""
        s_cmp_lg_u64 {sr(sT2, 2)}, 0
        s_cselect_b32 {sr(sT0)}, 1, 0
        s_lshl_b32 {sr(sT0)}, {sr(sT0)}, {sr(sPl)}
        s_cmp_eq_u32 {sr(sRedo)}, 0
        s_cselect_b32 {sr(sT0)}, {sr(sT0)}, 0
        s_or_b32 {sr(sBad)}, {sr(sBad)}, {sr(sT0)}
        s_add_u32 {sr(sT1)}, {sr(sW4096)}, 65536
        """)
        if o.abl:
            a(f"s_mov_b32 {sr(sBad)}, 0")

    def set_o(self):
        self.a(f"""
        s_lshl_b32 {sr(sT0)}, s3, 1
        s_add_u32 {sr(sT0)}, {sr(sT0)}, {sr(sPl)}
        s_mul_i32 {sr(sT0)}, {sr(sT0)}, {QBYTES}
        s_add_u32 {sr(sO)}, {sr(sOUT)}, {sr(sT0)}
        s_addc_u32 {sr(sO + 1)}, {sr(sOUT + 1)}, 0
        """)

    def epilogue(self, mid):
        a = self.a
        o = self.o
        tag = "m" if mid else "f"
        inv = vNM
        wa = vNM + 10
        ra = vNM + 14
        cv = vS
        rb = vS + 16
        z = vr(vZ, 4)
        if not mid:
            a(f"""
            s_cmp_eq_u32 {sr(sStaged)}, 0
            s_cbranch_scc1 L_no4
            s_cmp_eq_u32 {sr(sW)}, 3
            s_cbranch_scc1 L_no4
            """)
            for i in range(4):
                off = f" offset:{1024 * i}" if i else ""
                a(f"buffer_store_dwordx4 {ar(aO4 + 4 * i, 4)}, {vr(vLane16)}, {sr(sO, 4)}, {sr(sT1)} offen{off}{self.st}")
            a.label("L_no4")
        self.set_o()
        a(f"s_lshl_b32 {sr(sEo)}, {sr(sW)}, 14")
        if mid:
            a(f"s_add_u32 {sr(sT0)}, {sr(sEo)}, {QREG}")
        else:
            a(f"""
            s_cmp_eq_u32 {sr(sStaged)}, 0
            s_cselect_b32 {sr(sT0)}, {QREG}, 0
            s_add_u32 {sr(sT0)}, {sr(sT0)}, {sr(sEo)}
            s_add_u32 {sr(sEo + 1)}, {sr(sEo)}, 4096
            s_add_u32 {sr(sEo + 2)}, {sr(sEo)}, 8192
            s_add_u32 {sr(sEo + 3)}, {sr(sEo)}, 12288
            """)
        a(f"v_add_u32 {vr(wa)}, {sr(sT0)}, {vr(vEw)}")
        a(f"v_add_u32 {vr(ra)}, {sr(sT0)}, {vr(vEr)}")
        for k in range(1, 4):
            a(f"v_xor_b32 {vr(wa + k)}, {k << 5}, {vr(wa)}")
        a(f"v_xor_b32 {vr(ra + 1)}, 64, {vr(ra)}")

        def store(u, i):
            if u < 4:
                off = f" offset:{1024 * u}" if u else ""
                so = sEo + i
            else:
                off = f" offset:{1024 * i}" if i else ""
                so = sT1
            if o.nost:
                return "s_nop 0"
            return f"buffer_store_dwordx4 {vr(rb + 16 * (u & 1) + 4 * i, 4)}, {vr(vLane16)}, {sr(sO, 4)}, {sr(so)} offen{off}{self.st}"

        def convert(u, eb, extra=None):
            for dt in range(8):
                tb = cv + 4 * (dt & 3)
                acc = aO + 32 * u + 4 * dt
                for r in range(4):
                    a(f"v_accvgpr_read_b32 {vr(tb + r)}, {ar(acc + r)}")
                for r in range(2):
                    a(f"v_pk_mul_f32 {vr(tb + 2 * r, 2)}, {vr(tb + 2 * r, 2)}, {vr(inv + 2 * u, 2)} op_sel_hi:[1,0]")
                for r in range(2):
                    a(f"v_cvt_pk_bf16_f32 {vr(tb + r)}, {vr(tb + 2 * r)}, {vr(tb + 2 * r + 1)}")
                if mid:
                    a(f"{M16} {ar(acc, 4)}, {z}, {z}, 0")
                if extra and dt == 3:
                    a("s_waitcnt lgkmcnt(3)")
                a(f"ds_write_b64 {vr(wa + (dt & 3))}, {vr(tb, 2)} offset:{eb + 128 * (dt >> 2)}")
                if extra and 3 <= dt < 7:
                    a(extra[dt - 3])

        if mid:
            a(f"""
            s_mov_b32 {sr(sStaged)}, 13
            s_cmp_eq_u32 {sr(sW)}, 3
            s_cbranch_scc0 L_m4
            v_add_u32 {vr(vDr)}, {QREG}, {vr(vEr)}
            v_xor_b32 {vr(vDr + 1)}, 64, {vr(vDr)}
            s_branch L_m03
            """)
            a.label("L_m4")
            convert(4, 0)
            for i in range(4):
                a(f"ds_read_b128 {ar(aO4 + 4 * i, 4)}, {vr(ra + (i & 1))} offset:{1024 * i}")
            a.label("L_m03")
            for u in range(4):
                convert(u, 4096 * u)
            return
        for u in range(5):
            if u == 4:
                a(f"""
                s_cmp_eq_u32 {sr(sW)}, 3
                s_cbranch_scc1 L_epi3
                """)
            eb = (u & 3) * 4096
            convert(u, eb, [store(u - 1, i) for i in range(4)] if u else None)
            for i in range(4):
                a(f"ds_read_b128 {vr(rb + 16 * (u & 1) + 4 * i, 4)}, {vr(ra + (i & 1))} offset:{eb + 1024 * i}")
        for i in range(4):
            a(f"s_waitcnt lgkmcnt({3 - i})")
            a(store(4, i))
        a("s_branch L_epidone")
        a.label("L_epi3")
        for i in range(4):
            a(f"s_waitcnt lgkmcnt({3 - i})")
            a(store(3, i))
        a.label("L_epidone")

    def prologue(self):
        a = self.a
        x0, x1 = vX, vX + 1
        a(f"""
        s_cmp_eq_u32 {sr(sPrev)}, 0
        s_cselect_b32 {sr(sPl)}, {sr(sHl)}, 1
        s_or_b32 {sr(sT0)}, {sr(sPl)}, {sr(sRedo)}
        s_xor_b32 {sr(sNext)}, {sr(sT0)}, 1
        s_mul_i32 {sr(sQstop)}, {sr(sNext)}, {16 // self.o.qrate - self.o.qpro}
        s_mul_i32 {sr(sStop)}, {sr(sNext)}, 3
        s_add_u32 {sr(sStop)}, {sr(sStop)}, 13
        s_add_u32 {sr(sQS)}, {sr(sQS)}, {QBYTES}
        s_addc_u32 {sr(sQS + 1)}, {sr(sQS + 1)}, 0
        s_mov_b32 {sr(sJ)}, 0
        s_mov_b32 {sr(sQn)}, {self.o.qrate * self.o.qpro}
        s_waitcnt lgkmcnt(0)
        """)
        tq = vS

        def scale(d0, d1):
            for d in range(d0, d1, 2):
                t0 = tq + 4 * ((d >> 1) & 3)
                for u in range(2):
                    a(f"v_lshlrev_b32 {vr(t0 + 2 * u)}, 16, {vr(vQ + d + u)}")
                    a(f"v_and_b32 {vr(t0 + 2 * u + 1)}, {sr(sMask)}, {vr(vQ + d + u)}")
                for u in range(2):
                    a(f"v_pk_mul_f32 {vr(t0 + 2 * u, 2)}, {vr(t0 + 2 * u, 2)}, {sr(sC, 2)}")
                for u in range(2):
                    a(f"v_cvt_pk_bf16_f32 {vr(vQ + d + u)}, {vr(t0 + 2 * u)}, {vr(t0 + 2 * u + 1)}")

        scale(0, 64)
        a(f"""
        s_cmp_eq_u32 {sr(sW)}, 3
        s_cbranch_scc1 L_q4done
        s_cmp_eq_u32 {sr(sPrev)}, 0
        s_cbranch_scc0 L_q4ok
        s_waitcnt vmcnt(8)
        """)
        a.label("L_q4ok")
        for d in range(16):
            a(f"v_accvgpr_read_b32 {vr(vQ + 64 + d)}, {ar(aQ4 + d)}")
        scale(64, 80)
        a.label("L_q4done")
        for u in range(5):
            a(f"v_mov_b32 {vr(vM + u)}, {NEGINF:#x}")
        z = vr(vZ, 4)
        zl = [f"{M32} {ar(aV + 16 * i, 16)}, {z}, {z}, 0" for i in range(4)]
        for u in range(5):
            a(f"{M16} {vr(VLS[u], 4)}, {z}, {z}, 0")
        a(f"""
        s_mov_b32 {sr(sT3)}, 0
        s_cmp_eq_u32 {sr(sPrev)}, 0
        s_cbranch_scc0 L_maxgo
        s_cmp_eq_u32 {sr(sW)}, 3
        s_waitcnt vmcnt(32)
        s_cbranch_scc1 L_t0w
        s_waitcnt vmcnt(0)
        """)
        a.label("L_t0w")
        a("s_barrier")
        a(f"""
        s_lshl_b32 {sr(sT3)}, {sr(sRedo)}, 6
        s_lshl_b32 {sr(sT2)}, {sr(sPl)}, 18
        v_and_b32 {vr(x0)}, 15, v0
        v_lshlrev_b32 {vr(x0)}, 8, {vr(x0)}
        v_lshrrev_b32 {vr(x1)}, 4, v0
        v_lshl_or_b32 {vr(x0)}, {vr(x1)}, 4, {vr(x0)}
        """)
        a.label("L_max")
        a(f"""
        s_cmp_eq_u32 {sr(sT3)}, 0
        s_cbranch_scc1 L_maxlds
        """)
        for c in range(4):
            a(f"buffer_load_dwordx4 {vr(vK + 4 * c, 4)}, {vr(x0)}, {sr(sA, 4)}, {sr(sT2)} offen offset:{64 * c}")
        a(f"""
        s_add_u32 {sr(sT2)}, {sr(sT2)}, 4096
        s_waitcnt vmcnt(0)
        s_branch L_maxgo
        """)
        a.label("L_maxlds")
        for x in range(16):
            a(k_read(x, 0))
        a("s_waitcnt lgkmcnt(12)")
        a.label("L_maxgo")
        mb = vS + 16
        for u in range(5):
            for c in range(4):
                a(qk_mfma(u, mb + 4 * u, c, "0"))
            if u >= 2:
                b = mb + 4 * (u - 2)
                a(f"v_max3_f32 {vr(vM + u - 2)}, {vr(vM + u - 2)}, {vr(b)}, {vr(b + 1)}")
                a(f"v_max3_f32 {vr(vM + u - 2)}, {vr(vM + u - 2)}, {vr(b + 2)}, {vr(b + 3)}")
        a(zl[0])
        a("s_nop 2")
        for u in (3, 4):
            b = mb + 4 * u
            a(f"v_max3_f32 {vr(vM + u)}, {vr(vM + u)}, {vr(b)}, {vr(b + 1)}")
            a(f"v_max3_f32 {vr(vM + u)}, {vr(vM + u)}, {vr(b + 2)}, {vr(b + 3)}")
        a(f"""
        s_sub_u32 {sr(sT3)}, {sr(sT3)}, 1
        s_cbranch_scc0 L_max
        """)
        rest = self.allreduce5("v_max_f32", vM, vS)
        k = 1
        for i, ln in enumerate(rest):
            if i % 8 == 0 and k < 4:
                a(zl[k])
                k += 1
            a(ln)
        for r in range(4):
            a(f"v_sub_f32 {vr(vNM + r)}, 0, {vr(vM)}")
        a("s_waitcnt lgkmcnt(0)")
        rest = []
        for u in range(1, 5):
            for r in range(4):
                rest.append(f"v_sub_f32 {vr(vNM + 4 * u + r)}, 0, {vr(vM + u)}")
        for r in (0, 1, 2, 3, 8, 9, 10, 11):
            rest.append(f"v_mov_b32 {vr(vS + 32 + r)}, 0")
        for r in range(4):
            rest.append(f"v_mov_b32 {vr(vZ + r)}, 0x3f803f80")
        a(rest[:1])
        rest = rest[1:]
        for x in range(8):
            a(qk_mfma(0, vS + 4 * (x >> 2), x, vr(vNM, 4)))
            a(rest[4 * x: 4 * x + 4])
        a(f"""
        s_cmp_eq_u32 {sr(sPrev)}, 0
        s_cbranch_scc0 L_prodone
        s_cmp_eq_u32 {sr(sW)}, 3
        s_cbranch_scc1 L_pro3
        s_cmp_eq_u32 {sr(sNext)}, 0
        s_cbranch_scc1 L_prodone
        """)
        a(self.q4_loads())
        a("s_branch L_prodone")
        a.label("L_pro3")
        a(f"""
        s_cmp_eq_u32 {sr(sNext)}, 0
        s_cbranch_scc1 L_nonext
        s_mov_b32 {sr(sQoff)}, 0
        """)
        for w in range(4 * self.o.qpro):
            a([f"s_mov_b32 m0, {QREG + 4096 * w}", "s_nop 0"] + [self.dma(sQS, vD4 + w, sQoff, i) for i in range(self.o.qrate)])
        a.label("L_nonext")
        self.loader_tile(2)
        a.label("L_prodone")

    def text(self):
        return (HEADER + f""".amdgcn_target "amdgcn-amd-amdhsa--gfx950"
.text
.globl {NAME}_kernel
.p2align 8
.type {NAME}_kernel,@function
{NAME}_kernel:
""" + self.a.text() + f""".section .rodata,"a"
.p2align 6
.amdhsa_kernel {NAME}_kernel
  .amdhsa_next_free_vgpr 512
  .amdhsa_next_free_sgpr {NSGPR}
  .amdhsa_accum_offset 256
  .amdhsa_group_segment_fixed_size 0
  .amdhsa_kernarg_size 48
  .amdhsa_user_sgpr_count 2
  .amdhsa_user_sgpr_kernarg_segment_ptr 1
  .amdhsa_system_sgpr_workgroup_id_x 1
.end_amdhsa_kernel
""")


_REG = re.compile(r"\b([va])(?:(\d+)|\[(\d+):(\d+)\])")


def regs(op):
    m = _REG.fullmatch(op.strip())
    if not m:
        return set()
    lo = int(m.group(2) or m.group(3))
    hi = int(m.group(2) or m.group(4))
    return {(m.group(1), i) for i in range(lo, hi + 1)}


def check_scc(body):
    last = None
    for ln in body:
        mn = ln.split(" ")[0]
        if mn.startswith(("s_cselect", "s_cbranch_scc")):
            assert last is not None and last.startswith("s_cmp"), (last, ln)
        if mn.startswith(("s_cmp", "s_add", "s_sub", "s_and", "s_or", "s_xor", "s_lsh", "s_mul_hi")):
            last = mn


def check_hazards(body, cyclic=True):
    ins = [ln for ln in body if not ln.endswith(":")]
    seq = ins + ins if cyclic else ins
    info = []
    for ln in seq:
        mn, _, rest = ln.partition(" ")
        ops = [x.strip().split(" ")[0] for x in rest.split(",")] if rest else []
        info.append((mn, ops, ln))

    def states(i, j):
        n = 0
        for k in range(i + 1, j):
            mn, ops, _ = info[k]
            n += int(ops[0]) + 1 if mn == "s_nop" else 1
        return n

    N = len(seq)
    for i, (mn, ops, ln) in enumerate(info[: len(ins)]):
        if mn.startswith("v_mfma"):
            big = "32x32" in mn
            dAB, dC, dV, dW = (12, 10, 12, 7) if big else (8, 6, 8, 3)
            d = regs(ops[0])
            c = regs(ops[3])
            for j in range(i + 1, min(N, i + 20)):
                mn2, ops2, ln2 = info[j]
                if mn2.startswith("v_mfma"):
                    if (regs(ops2[1]) | regs(ops2[2])) & d and states(i, j) < dAB:
                        raise SystemExit(f"hazard mfma D->AB: {ln} -> {ln2}")
                    c2 = regs(ops2[3])
                    if c2 & d and c2 != d and states(i, j) < dC:
                        raise SystemExit(f"hazard mfma D->C overlap: {ln} -> {ln2}")
                elif mn2.startswith(("v_", "ds_", "buffer_")):
                    touched = set()
                    for o_ in ops2:
                        touched |= regs(o_)
                    if touched & d and states(i, j) < dV:
                        raise SystemExit(f"hazard mfma D->valu ({states(i, j)}): {ln} -> {ln2}")
                    if mn2.startswith("v_") and regs(ops2[0]) & c and states(i, j) < dW:
                        raise SystemExit(f"hazard mfma C war: {ln} -> {ln2}")
        elif mn.startswith("v_"):
            d = regs(ops[0])
            if "permlane" in mn:
                d |= regs(ops[1])
            for j in range(i + 1, min(N, i + 4)):
                mn2, ops2, ln2 = info[j]
                if mn2.startswith("v_mfma"):
                    if (regs(ops2[1]) | regs(ops2[2]) | regs(ops2[3])) & d and states(i, j) < 2:
                        raise SystemExit(f"hazard valu->mfma: {ln} -> {ln2}")
                elif "permlane" in mn2 and (regs(ops2[0]) | regs(ops2[1])) & d and states(i, j) < 2:
                    raise SystemExit(f"hazard valu->permlane: {ln} -> {ln2}")
                elif mn in ("v_exp_f32", "v_rcp_f32") and mn2.startswith("v_") and states(i, j) < 1:
                    src = set()
                    for o_ in ops2[1:]:
                        src |= regs(o_)
                    if src & d:
                        raise SystemExit(f"hazard trans->valu: {ln} -> {ln2}")
        elif mn.startswith("buffer_store_dwordx4"):
            d = regs(ops[0])
            for j in range(i + 1, min(N, i + 3)):
                mn2, ops2, ln2 = info[j]
                if mn2.startswith(("v_", "ds_read")) and regs(ops2[0]) & d and states(i, j) < 2:
                    raise SystemExit(f"hazard store data war: {ln} -> {ln2}")
        elif mn.startswith("s_") and ops and ops[0] == "m0":
            if i + 1 < N and info[i + 1][0].startswith("buffer_"):
                raise SystemExit(f"hazard m0: {ln}")


def ilist(s):
    return [int(x) for x in s.split(",")]


def main():
    p = argparse.ArgumentParser()
    p.add_argument("-o", default=f"cdna_kernels/{NAME}.s")
    p.add_argument("--nt", type=int, default=1)
    p.add_argument("--stmode", type=int, default=4)
    p.add_argument("--vslots", type=ilist, default=[1, 1, 4, 4, 7, 7, 10, 10, 13, 13, 16, 16, 19, 19, 22, 22, 25, 25, 28, 28,
                                                    30, 30, 31, 31, 32, 32, 33, 33, 34, 34, 35, 35])
    p.add_argument("--kslots", type=ilist, default=[120, 120, 124, 124, 128, 128, 132, 132, 136, 136, 140, 140, 144, 144, 148, 148])
    p.add_argument("--fat", type=ilist, default=[])
    p.add_argument("--elag", type=int, default=4)
    p.add_argument("--barslot", type=int, default=52)
    p.add_argument("--dstep", type=int, default=2)
    p.add_argument("--lat", type=int, default=7)
    p.add_argument("--qpro", type=int, default=1)
    p.add_argument("--qrate", type=int, default=2)
    p.add_argument("--slow", type=int, default=0)
    p.add_argument("--stag", type=int, default=0)
    p.add_argument("--stagm", type=int, default=3)
    p.add_argument("--pref", type=int, default=1)
    p.add_argument("--nost", type=int, default=0)
    p.add_argument("--remap", type=int, default=1)
    p.add_argument("--rotsh", type=int, default=0)
    p.add_argument("--rotmul", type=int, default=0)
    p.add_argument("--abl", default="")
    p.add_argument("--stamps", type=int, default=0)
    o = p.parse_args()
    g = Gen(o)
    g.gen()
    if not o.abl:
        check_hazards(g.a.lines, cyclic=False)
    open(o.o, "w").write(g.text())


if __name__ == "__main__":
    main()
```

```python
import argparse
import re
import struct

NAME = "standalone__mha_softmax__near_ridge"

HEADER = """; Kernarg layout for this problem (48 bytes, ptrs only, base s[0:1]):
; @launch grid=(256,1,1) block=(256,1,1) lds=163840
"""

QBYTES = 304 * 256
TILE = 16384
VREG = 3 * TILE
QREG = 6 * TILE


def f2u(x):
    return struct.unpack("<I", struct.pack("<f", x))[0]


CSCALE = f2u((128.0 ** -0.5) * 1.4426950408889634)
LIMIT = f2u(2.0 ** 40)
NEGINF = 0xFF800000

sQ, sK, sV, sOUT = 4, 6, 8, 10
sA, sB, sO, sQS = 12, 16, 20, 24
sOff, sQoff, sG, sStop = 28, 29, 30, 31
sRot = 34
sStaged = 35
sQstop, sSize = 32, 33
sW4096, sJ = 36, 37
sMask = 39
sEo = 40
sRelax, sBad, sRedo = 44, 45, 46
sW, sNext, sPrev = 47, 48, 49
sC = 50
sT0, sT1, sT2, sT3 = 54, 55, 56, 57
sQn = 58
sLim = 62
sHl = 63
sPl = 64
sPg = 76
sPace = 65
sStep = 66
sDx = 61
sXcc = 60
sRep = 67
sDbg = 68
sTS = 80
NSGPR = 88

vDma = 1
vKA = 2
vVA = 6
vKg, vQ4, vEw, vEr, vLane16 = 14, 15, 16, 17, 18
vST = 19
VLS = [20, 24, 28, 248, 252]
vQ = 32
vNM = 112
vZ = 132
vS = 136
vK = 184
vM = vS + 40
vX = vS + 45
vPa, vPv, vPw, vPr = vQ + 72, vQ + 73, vQ + 74, vQ + 75
vD4 = vQ + 68
SU = 34
aO = 0
aV = 160
aQ4 = 224
aO4 = 240
vDr = vQ + 64
aDr = aO + 128

M16 = "v_mfma_f32_16x16x32_bf16"
M32 = "v_mfma_f32_32x32x16_bf16"
EROW = 272
UBS = {5: [0, 1, 0, 1, 2], 4: [0, 1, 0, 2]}


class Asm:
    def __init__(self):
        self.lines = []

    def __call__(self, s):
        if isinstance(s, list):
            for x in s:
                self(x)
            return
        for ln in s.strip("\n").split("\n"):
            ln = ln.strip()
            if ln:
                self.lines.append(ln)

    def label(self, n):
        self.lines.append(n + ":")

    def text(self):
        out = []
        for ln in self.lines:
            out.append(ln if ln.endswith(":") or ln.startswith(".") else "    " + ln)
        return "\n".join(out) + "\n"


def vr(b, n=1):
    return f"v{b}" if n == 1 else f"v[{b}:{b + n - 1}]"


def ar(b, n=1):
    return f"a{b}" if n == 1 else f"a[{b}:{b + n - 1}]"


def sr(b, n=1):
    return f"s{b}" if n == 1 else f"s[{b}:{b + n - 1}]"


def qk_mfma(u, dst, x, cinit):
    c = x & 3
    d = vr(dst, 4)
    return f"{M16} {d}, {vr(vK + 4 * x, 4)}, {vr(vQ + 16 * u + 4 * c, 4)}, {d if c else cinit}"


def pv_mfma(u, buf, f):
    dt, t = f >> 1, f & 1
    d = ar(aO + 32 * u + 4 * dt, 4)
    return f"{M16} {d}, {ar(aV + 4 * f, 4)}, {vr(vS + 16 * buf + 8 * t, 4)}, {d}"


def k_read(x, slot):
    off = TILE * slot + 1024 * (x >> 2)
    return f"ds_read_b128 {vr(vK + 4 * x, 4)}, {vr(vKA + (x & 3))}" + (f" offset:{off}" if off else "")


def v_read(k, slot):
    f, jj = k >> 1, k & 1
    dt, t = f >> 1, f & 1
    off = TILE * slot + 1024 * (2 * t + jj)
    return f"ds_read_b64_tr_b16 {ar(aV + 4 * f + 2 * jj, 2)}, {vr(vVA + dt)}" + (f" offset:{off}" if off else "")


class Gen:
    def __init__(self, opt):
        self.o = opt
        self.a = Asm()
        self.nt = {0: "", 1: " nt", 2: " sc1 nt", 3: " sc0 sc1 nt", 4: " sc0 nt", 5: " sc1", 6: " sc0 sc1"}[opt.nt]
        self.st = {0: "", 1: " nt", 2: " sc1", 3: " sc0 sc1", 4: " sc1 nt", 5: " sc0 sc1 nt"}[opt.stmode]

    def dma(self, srd, voff, soff, i):
        o = f" offset:{1024 * i}" if i else ""
        return f"buffer_load_dwordx4 {vr(voff)}, {sr(srd, 4)}, {sr(soff)} offen{o}{self.nt} lds"

    def tile_groups(self, slot):
        G = []
        for half in (0, 1):
            for w in range(4):
                m0 = half * VREG + slot * TILE + 4096 * w
                G.append((f"s_mov_b32 m0, {m0}", [self.dma(sA if half == 0 else sB, vD4 + w, sOff, i) for i in range(4)]))
        return G

    def loader_tile(self, slot):
        a = self.a
        for m0, ds in self.tile_groups(slot):
            a(m0)
            a("s_nop 0")
            a(ds)
        a(self.tile_advance())

    def tile_off(self):
        return [f"s_add_u32 {sr(sOff)}, {sr(sG)}, {sr(sRot)}",
                f"s_and_b32 {sr(sOff)}, {sr(sOff)}, 15",
                f"s_and_b32 {sr(sT1)}, {sr(sG)}, 16",
                f"s_or_b32 {sr(sOff)}, {sr(sOff)}, {sr(sT1)}",
                f"s_lshl_b32 {sr(sOff)}, {sr(sOff)}, 14"]

    def tile_advance(self):
        return [f"s_add_u32 {sr(sG)}, {sr(sG)}, 1"] + self.tile_off()

    def own_q(self, u):
        L = []
        for w in range(4):
            L += [f"s_add_u32 m0, {sr(sQoff)}, {QREG + 4096 * w}", "s_nop 0", self.dma(sQS, vD4 + w, sQoff, u)]
        return L

    def q4_loads(self):
        return [f"buffer_load_dwordx4 {ar(aQ4 + 4 * c, 4)}, {vr(vQ4)}, {sr(sQS, 4)}, 0 offen offset:{64 * c}{self.nt}" for c in range(4)]

    def stamp_lines(self):
        return [f"s_memtime {sr(sTS, 2)}", f"s_memrealtime {sr(sTS + 2, 2)}", "s_waitcnt lgkmcnt(0)",
                f"v_mov_b32 {vr(vST)}, {sr(sTS)}",
                f"buffer_store_dword {vr(vST)}, off, {sr(sDbg, 4)}, {sr(sTS + 4)}",
                f"v_mov_b32 {vr(vST)}, {sr(sTS + 2)}",
                f"buffer_store_dword {vr(vST)}, off, {sr(sDbg, 4)}, {sr(sTS + 4)} offset:4",
                f"s_add_u32 {sr(sTS + 4)}, {sr(sTS + 4)}, 8"]

    def stamp(self):
        if self.o.stamps:
            self.a(self.stamp_lines())

    def loop_third(self, NU, slot, tag, drain=-1):
        o = self.o
        N = SU * NU
        START = N - 8
        UB = UBS[NU]
        loader = NU == 4
        mf = []
        for n in range(NU):
            p = (n - 1) % NU
            q = (n + 1) % NU
            for f in range(16):
                mf.append(pv_mfma(p, UB[p], f))
            for t in range(2):
                d = vr(VLS[p], 4)
                mf.append(f"{M16} {d}, {vr(vZ, 4)}, {vr(vS + 16 * UB[p] + 8 * t, 4)}, {d}")
            for x in range(16):
                mf.append(qk_mfma(q, vS + 16 * UB[q] + 4 * (x >> 2), x, vr(vNM + 4 * q, 4)))
        sal = [[] for _ in range(N)]
        mem = [[] for _ in range(N)]
        post = [[] for _ in range(N)]
        val = [[] for _ in range(N)]
        need = {}
        need2 = {}
        k0 = N - SU - 16
        cap = [2] * N
        for n in range(NU):
            b = vS + 16 * UB[n]
            for e in range(16):
                s = (SU * n - 6 + 2 * e) % N
                val[s].append(f"v_exp_f32 {vr(b + e)}, {vr(b + e)}")
                cap[s] -= 2
                if e & 1:
                    k = e >> 1
                    val[s + 1].append(f"v_cvt_pk_bf16_f32 {vr(b + 8 * (k >> 2) + (k & 3))}, {vr(b + e - 1)}, {vr(b + e)}")
                    cap[s + 1] -= 1
        vs = []
        s = 0
        for k in range(32):
            while cap[s] <= 0 or s < (k >> 1):
                s += 1
            assert s <= SU + (k >> 1) - o.lat, (k, s)
            vs.append(s)
            cap[s] -= 1
            mem[s].append(v_read(k, slot))
        for f in range(16):
            need[SU + f] = ("V", 2 * f + 1)
        s = k0
        for x in range(16):
            while cap[s] <= 0 or s < k0 + 2 * x:
                s += 1
            assert s < START and s <= k0 + SU + x - o.lat
            cap[s] -= 1
            mem[s].append(k_read(x, (slot + 1) % 3))
        for x in range(16):
            need[k0 + SU + x] = ("K", x)
        bs = o.barslot if loader else o.barc
        assert bs < k0
        assert bs > max(vs) + 6
        if drain >= 0:
            sal[bs - 1].append(f"s_waitcnt vmcnt({[32, 22, 63][drain]}) lgkmcnt(0)")
            sal[bs].append("s_barrier")
            pieces = list(range(64))[[0, 22, 43][drain]:[22, 43, 64][drain]]
            s = bs + 2
            for k, p in enumerate(pieces):
                w, u, i = p >> 4, (p >> 2) & 3, p & 3
                d = aDr + 4 * (k & 7)
                mem[s].insert(0, f"ds_read_b128 {ar(d, 4)}, {vr(vDr + (i & 1))} offset:{1024 * p}")
                s2 = s + 9
                need2[s2] = ("D", k & 7)
                sal[s2].append(f"s_movk_i32 {sr(sT0)}, {(16384 * w + 4096 * i) >> 1}" if False else f"s_mov_b32 {sr(sT0)}, {16384 * w + 4096 * i}")
                off = f" offset:{1024 * u}" if u else ""
                mem[s2].insert(0, f"buffer_store_dwordx4 {ar(d, 4)}, {vr(vLane16)}, {sr(sO, 4)}, {sr(sT0)} offen{off}{self.st}")
                s += 2
            assert s + 9 < START
        elif loader:
            for i, ln in enumerate([f"s_lshr_b32 {sr(sT0)}, {sr(sQn)}, 2",
                                    f"s_mul_i32 {sr(sT0)}, {sr(sT0)}, 12288",
                                    f"s_lshl_b32 {sr(sQoff)}, {sr(sQn)}, 10",
                                    f"s_add_u32 {sr(sQoff)}, {sr(sQoff)}, {sr(sT0)}",
                                    f"s_add_u32 {sr(sQn)}, {sr(sQn)}, {o.qrate}",
                                    f"s_cmp_lt_u32 {sr(sJ)}, {sr(sStop)}",
                                    f"s_cselect_b32 {sr(sA + 2)}, {sr(sSize)}, 0",
                                    f"s_mov_b32 {sr(sB + 2)}, {sr(sA + 2)}"]):
                sal[10 + i].append(ln)
            sal[bs - 1].append(f"s_waitcnt vmcnt({o.vodd}) lgkmcnt(0)")
            if o.strict >= 0:
                sal[bs - 1] += [f"s_bitcmp1_b32 {sr(sXcc) if o.xcc else 's2'}, 0", f"s_cbranch_scc1 L_odd{tag}", f"s_waitcnt vmcnt({o.strict})", f"L_odd{tag}:"]
            sal[bs].append("s_barrier")
            if o.pace:
                poll = f"buffer_load_dword {vr(vPv)}, {vr(vPa)}, {sr(sPg, 4)}, 0 offen sc1"
                sal[bs + 1] += [f"s_add_u32 {sr(sStep)}, {sr(sStep)}, 1",
                                f"v_mov_b32 {vr(vPw)}, {sr(sStep)}",
                                f"buffer_store_dword {vr(vPw)}, {vr(vPr)}, {sr(sPg, 4)}, 0 offen sc1",
                                f"v_add_u32 {vr(vPv)}, {sr(sPace)}, {vr(vPv)}",
                                f"v_cmp_gt_u32 vcc, {sr(sStep)}, {vr(vPv)}",
                                f"s_mov_b32 {sr(sT0)}, {o.tries}",
                                "s_nop 3",
                                f"s_cbranch_vccz L_go{tag}",
                                f"L_spin{tag}:",
                                poll,
                                "s_waitcnt vmcnt(0)",
                                f"v_add_u32 {vr(vPv)}, {sr(sPace)}, {vr(vPv)}",
                                f"v_cmp_ge_u32 vcc, {sr(sStep)}, {vr(vPv)}",
                                f"s_sub_u32 {sr(sT0)}, {sr(sT0)}, 1",
                                f"s_cmp_eq_u32 {sr(sT0)}, 0",
                                f"s_cselect_b32 {sr(sPace)}, 0x10000, {sr(sPace)}",
                                f"s_cbranch_scc1 L_go{tag}",
                                "s_nop 1",
                                f"s_cbranch_vccnz L_spin{tag}",
                                f"L_go{tag}:",
                                poll]
            sal[bs + 1] += [f"s_cmp_ge_u32 {sr(sJ)}, {sr(sQstop)}", f"s_cbranch_scc1 L_noq{tag}"]
            for rep in range((o.qrate + 3) // 4):
                if rep:
                    sal[bs + 1].append(f"s_add_u32 {sr(sQoff)}, {sr(sQoff)}, {TILE}")
                for w in range(4):
                    sal[bs + 1] += [f"s_add_u32 m0, {sr(sQoff)}, {QREG + 4096 * w}", "s_nop 0"]
                    sal[bs + 1] += [self.dma(sQS, vD4 + w, sQoff, i) for i in range(min(o.qrate, 4))]
            sal[bs + 1].append(f"L_noq{tag}:")
            s = bs + 3
            for m0, ds in self.tile_groups(slot):
                sal[s - 1].append(m0)
                for d in ds:
                    mem[s].insert(0, d)
                    s += o.dstep
            assert s - o.dstep < START - 4
            sal[START - 3].append(f"s_add_u32 {sr(sG)}, {sr(sG)}, 1")
            for i, ln in enumerate(self.tile_off()):
                sal[20 + i].append(ln)
        else:
            sal[bs - 1].append("s_waitcnt lgkmcnt(0)")
            sal[bs].append("s_barrier")
            if o.soft:
                for k in range(4):
                    sal[10 + 40 * k] += [f"s_cmp_ge_u32 {sr(sJ)}, {sr(sRelax)}", f"s_cbranch_scc1 L_ns{tag}{k}", f"s_sleep {o.softd}", f"L_ns{tag}{k}:"]
        if drain < 0:
            sal[START - 4].append(f"s_add_u32 {sr(sJ)}, {sr(sJ)}, 1")
            if loader and slot == 1:
                sal[START - 2].append(f"s_cmp_eq_u32 {sr(sJ)}, {sr(sStaged)}")
                post[START - 1].append("s_cbranch_scc1 L_drain")
            elif slot < 2:
                sal[START - 2].append(f"s_cmp_eq_u32 {sr(sJ)}, 16")
                post[START - 1].append(f"s_cbranch_scc1 L_tail{NU}")
            else:
                post[START - 1].append(f"s_branch L_loop{NU}_0")
        if o.slow and not loader:
            for i in range(o.slow):
                post[(i * N) // o.slow + 2].insert(0, "s_nop 3")
        if o.stamps > 1:
            post[70] += self.stamp_lines()
        order = [(START + i) % N for i in range(N)]
        body = []
        for s in order:
            body.append(mf[s])
            nxt = (s + 1) % N
            if nxt in need:
                body.append(("WAIT", need[nxt]))
            if s in need2:
                body.append(("WAIT", need2[s]))
            body += sal[s] + mem[s] + val[s] + post[s]

        def tagof(x):
            if x.startswith("ds_read_b128 a"):
                return ("D", (int(x.split("[")[1].split(":")[0]) - aDr) // 4)
            if x.startswith("ds_read_b128"):
                return ("K", (int(x.split("[")[1].split(":")[0]) - vK) // 4)
            return ("V", (int(x.split("[")[1].split(":")[0]) - aV) // 2)

        out = []
        done = set()
        for i, ln in enumerate(body):
            if isinstance(ln, tuple):
                if ln[1] in done:
                    continue
                cnt = young = nmf = 0
                j = i
                while True:
                    j = (j - 1) % len(body)
                    x = body[j]
                    if isinstance(x, tuple):
                        continue
                    if x.startswith("v_mfma"):
                        nmf += 1
                    if x.startswith("ds_"):
                        if tagof(x) == ln[1]:
                            break
                        cnt += 1
                        if nmf <= o.lat:
                            young += 1
                cnt = min(cnt, young, 15)
                out.append(f"s_waitcnt lgkmcnt({cnt})")
                j = i
                k = 0
                seen = set()
                for _ in range(len(body)):
                    j = (j - 1) % len(body)
                    x = body[j]
                    if isinstance(x, str) and x.startswith("ds_"):
                        k += 1
                        if k <= cnt:
                            seen.add(tagof(x))
                        elif tagof(x) not in seen:
                            done.add(tagof(x))
            else:
                if ln.startswith("ds_"):
                    done.discard(tagof(ln))
                out.append(ln)
        if o.abl:
            for key in (o.abl.split("|") if "|" in o.abl else o.abl.split(",")):
                out = [x for x in out if not x.startswith(key)]
        else:
            check_hazards(out)
        check_scc(out)
        return out, [mf[s] for s in range(18)]

    def gen(self):
        o = self.o
        a = self.a
        x0, x1, x2 = vX, vX + 1, vX + 2

        a("""
        s_cmp_ge_u32 s2, 256
        s_cbranch_scc1 L_exit
        s_load_dwordx8 s[4:11], s[0:1], 0
        """)
        if o.pace:
            a(f"""
            s_load_dwordx2 {sr(sPg, 2)}, s[0:1], 32
            s_mov_b32 {sr(sPg + 2)}, 64
            s_mov_b32 {sr(sPg + 3)}, 0x00020000
            s_mov_b32 {sr(sPace)}, {o.pace}
            s_mov_b32 {sr(sStep)}, 0
            s_lshl_b32 {sr(sRep)}, s2, 2
            v_and_b32 {vr(vPa)}, 15, v0
            v_lshlrev_b32 {vr(vPa)}, 2, {vr(vPa)}
            v_mov_b32 {vr(vPv)}, 0
            v_and_b32 {vr(vPr)}, 63, v0
            v_lshlrev_b32 {vr(vPr)}, 6, {vr(vPr)}
            v_add_u32 {vr(vPr)}, {sr(sRep)}, {vr(vPr)}
            """)
        if o.pref:
            a(f"""
            s_getpc_b64 {sr(sT2, 2)}
            v_lshlrev_b32 {vr(vX)}, 7, v0
            v_add_u32 {vr(vX + 1)}, 0x8000, {vr(vX)}
            v_min_u32 {vr(vX + 1)}, L_exit-{NAME}_kernel-64, {vr(vX + 1)}
            global_load_dword {vr(vK)}, {vr(vX)}, {sr(sT2, 2)}
            global_load_dword {vr(vK)}, {vr(vX + 1)}, {sr(sT2, 2)}
            """)
        a(f"s_getreg_b32 {sr(sXcc)}, hwreg(HW_REG_XCC_ID)")
        if o.remap == 0:
            a("s_mov_b32 s3, s2")
        elif o.remap == 1:
            a(f"""
            s_lshr_b32 s3, s2, 3
            s_and_b32 {sr(sT0)}, s2, 7
            s_lshl_b32 {sr(sT0)}, {sr(sT0)}, 5
            s_or_b32 s3, s3, {sr(sT0)}
            """)
        elif o.remap == 2:
            a(f"""
            s_lshr_b32 {sr(sT0)}, s2, 3
            s_and_b32 {sr(sT0)}, {sr(sT0)}, 7
            s_xor_b32 s3, s2, {sr(sT0)}
            """)
        elif o.remap == 3:
            a("s_xor_b32 s3, s2, 1")
        if o.stamps:
            a(f"""
            s_load_dwordx2 {sr(sDbg, 2)}, s[0:1], 40
            s_mov_b32 {sr(sDbg + 2)}, 0x100000
            s_mov_b32 {sr(sDbg + 3)}, 0x00020000
            v_lshrrev_b32 {vr(vST)}, 6, v0
            v_lshl_add_u32 {vr(vST)}, s2, 2, {vr(vST)}
            v_lshlrev_b32 {vr(vST)}, 9, {vr(vST)}
            s_nop 0
            v_readfirstlane_b32 {sr(sTS + 4)}, {vr(vST)}
            """)
            self.stamp()
        a(f"""
        v_lshrrev_b32 {vr(x0)}, 6, v0
        v_and_b32 v0, 63, v0
        v_lshrrev_b32 {vr(x1)}, 4, v0
        v_readfirstlane_b32 {sr(sW)}, {vr(x0)}
        v_and_b32 {vr(x2)}, 15, v0
        v_lshlrev_b32 {vr(x0)}, 1, {vr(x1)}
        v_xor_b32 {vr(x2)}, {vr(x2)}, {vr(x0)}
        v_lshlrev_b32 {vr(x2)}, 4, {vr(x2)}
        v_lshl_or_b32 {vr(vD4)}, {vr(x1)}, 8, {vr(x2)}
        s_lshl_b32 {sr(sW4096)}, {sr(sW)}, 12
        s_lshr_b32 {sr(sT0)}, {sr(sW)}, 1
        s_mul_i32 {sr(sT0)}, {sr(sT0)}, 0x90
        s_and_b32 {sr(sT1)}, {sr(sW)}, 1
        s_lshl_b32 {sr(sT1)}, {sr(sT1)}, 7
        s_xor_b32 {sr(sT0)}, {sr(sT0)}, {sr(sT1)}
        s_or_b32 {sr(sDx)}, {sr(sT0)}, {sr(sW4096)}
        v_xor_b32 {vr(vDma)}, {sr(sDx)}, {vr(vD4)}
        s_lshl_b32 {sr(sT0)}, s3, 19
        s_mov_b32 {sr(sSize)}, {2 * 262144}
        s_mov_b32 {sr(sA + 3)}, 0x00020000
        s_mov_b32 {sr(sB + 3)}, 0x00020000
        s_mov_b32 {sr(sO + 3)}, 0x00020000
        s_mov_b32 {sr(sQS + 3)}, 0x00020000
        s_mov_b32 {sr(sO + 2)}, {QBYTES}
        s_mov_b32 {sr(sQS + 2)}, {QBYTES}
        s_mov_b32 {sr(sBad)}, 0
        s_mov_b32 {sr(sRedo)}, 0
        s_mov_b32 {sr(sHl)}, 0
        s_mov_b32 {sr(sPl)}, 0
        v_and_b32 {vr(x0)}, 15, v0
        v_lshlrev_b32 {vr(x0)}, 8, {vr(x0)}
        v_lshl_or_b32 {vr(x0)}, {vr(x1)}, 4, {vr(x0)}
        s_add_u32 {sr(sT1)}, {sr(sW4096)}, 65536
        v_add_u32 {vr(vQ4)}, {sr(sT1)}, {vr(x0)}
        s_waitcnt lgkmcnt(0)
        s_add_u32 {sr(sA)}, {sr(sK)}, {sr(sT0)}
        s_addc_u32 {sr(sA + 1)}, {sr(sK + 1)}, 0
        s_add_u32 {sr(sB)}, {sr(sV)}, {sr(sT0)}
        s_addc_u32 {sr(sB + 1)}, {sr(sV + 1)}, 0
        s_mov_b32 {sr(sO)}, {sr(sOUT)}
        s_mov_b32 {sr(sO + 1)}, {sr(sOUT + 1)}
        """)
        if o.stag:
            a(f"""
            s_lshr_b32 {sr(sT0)}, s2, 3
            s_and_b32 {sr(sT0)}, {sr(sT0)}, {o.stagm}
            """)
            a.label("L_stag")
            a(f"""
            s_cmp_eq_u32 {sr(sT0)}, 0
            s_cbranch_scc1 L_start
            s_sleep {o.stag}
            s_sub_u32 {sr(sT0)}, {sr(sT0)}, 1
            s_branch L_stag
            """)
        a.label("L_start")
        a(f"""
        s_lshl_b32 {sr(sT0)}, s3, 1
        s_add_u32 {sr(sT0)}, {sr(sT0)}, {sr(sHl)}
        s_mul_i32 {sr(sT0)}, {sr(sT0)}, {QBYTES}
        s_add_u32 {sr(sQS)}, {sr(sQ)}, {sr(sT0)}
        s_addc_u32 {sr(sQS + 1)}, {sr(sQ + 1)}, 0
        s_mov_b32 {sr(sPrev)}, 0
        s_lshl_b32 {sr(sG)}, {sr(sHl)}, 4
        s_lshr_b32 {sr(sRot)}, s2, {o.rotsh}
        s_mul_i32 {sr(sRot)}, {sr(sRot)}, {o.rotmul}
        s_mov_b32 {sr(sA + 2)}, {sr(sSize)}
        s_mov_b32 {sr(sB + 2)}, {sr(sSize)}
        s_mov_b32 {sr(sStaged)}, 0
        """)
        a(self.tile_off())
        a(f"""
        s_mov_b32 m0, {sr(sW4096)}
        v_xor_b32 {vr(vD4)}, {sr(sDx)}, {vr(vDma)}
        """)
        for i in range(4):
            a(self.dma(sA, vDma, sOff, i))
        a(f"""
        v_xor_b32 {vr(vD4 + 1)}, {0x1080}, {vr(vD4)}
        v_xor_b32 {vr(vD4 + 2)}, {0x2090}, {vr(vD4)}
        v_xor_b32 {vr(vD4 + 3)}, {0x3010}, {vr(vD4)}
        s_lshl_b32 {sr(sQoff)}, {sr(sW)}, 14
        """)
        for u in range(3):
            a(self.own_q(u))
        a(f"""
        v_and_b32 {vr(x0)}, 3, v0
        v_bfe_u32 {vr(x1)}, v0, 2, 2
        v_lshl_or_b32 {vr(x2)}, {vr(x1)}, 4, {vr(x0)}
        v_lshlrev_b32 {vr(vKg)}, 8, {vr(x2)}
        v_and_b32 {vr(x0)}, 7, v0
        v_lshlrev_b32 {vr(x0)}, 1, {vr(x0)}
        v_bfe_u32 {vr(x1)}, v0, 3, 1
        v_mul_u32_u24 {vr(x1)}, 9, {vr(x1)}
        v_xor_b32 {vr(x0)}, {vr(x0)}, {vr(x1)}
        v_lshrrev_b32 {vr(x1)}, 4, v0
        v_xor_b32 {vr(x0)}, {vr(x0)}, {vr(x1)}
        v_lshl_or_b32 {vr(vKg)}, {vr(x0)}, 4, {vr(vKg)}
        """)
        a(f"""
        v_bfe_u32 {vr(x0)}, v0, 2, 2
        v_lshrrev_b32 {vr(x1)}, 4, v0
        v_lshl_or_b32 {vr(x2)}, {vr(x1)}, 4, {vr(x0)}
        v_lshlrev_b32 {vr(vVA)}, 8, {vr(x2)}
        v_bfe_u32 {vr(x0)}, v0, 2, 3
        v_lshlrev_b32 {vr(x0)}, 1, {vr(x0)}
        v_lshrrev_b32 {vr(x1)}, 5, v0
        v_mul_u32_u24 {vr(x1)}, 9, {vr(x1)}
        v_xor_b32 {vr(x0)}, {vr(x0)}, {vr(x1)}
        v_bfe_u32 {vr(x1)}, v0, 1, 1
        v_xor_b32 {vr(x0)}, {vr(x0)}, {vr(x1)}
        v_lshl_or_b32 {vr(vVA)}, {vr(x0)}, 4, {vr(vVA)}
        v_and_b32 {vr(x1)}, 1, v0
        v_lshl_or_b32 {vr(vVA)}, {vr(x1)}, 3, {vr(vVA)}
        v_add_u32 {vr(vVA)}, {VREG}, {vr(vVA)}
        """)
        a(f"""
        v_and_b32 {vr(x0)}, 15, v0
        v_lshrrev_b32 {vr(x1)}, 4, v0
        v_xor_b32 {vr(x2)}, {vr(x0)}, {vr(x1)}
        v_lshlrev_b32 {vr(x2)}, 4, {vr(x2)}
        v_lshl_or_b32 {vr(vEr)}, {vr(x1)}, 8, {vr(x2)}
        v_and_b32 {vr(x2)}, 7, v0
        v_lshrrev_b32 {vr(vEw)}, 5, v0
        v_xor_b32 {vr(x2)}, {vr(x2)}, {vr(vEw)}
        v_lshlrev_b32 {vr(x2)}, 4, {vr(x2)}
        v_lshl_or_b32 {vr(vEw)}, {vr(x0)}, 8, {vr(x2)}
        v_and_b32 {vr(x1)}, 1, {vr(x1)}
        v_lshl_or_b32 {vr(vEw)}, {vr(x1)}, 3, {vr(vEw)}
        v_lshlrev_b32 {vr(vLane16)}, 4, v0
        s_mov_b32 {sr(sC)}, {CSCALE:#x}
        s_mov_b32 {sr(sC + 1)}, {CSCALE:#x}
        s_mov_b32 {sr(sLim)}, {LIMIT:#x}
        s_mov_b32 {sr(sMask)}, 0xffff0000
        s_lshl_b32 {sr(sT0)}, {sr(sW)}, 14
        s_add_u32 {sr(sT0)}, {sr(sT0)}, {QREG}
        """)
        for c in range(4):
            a(f"v_xor_b32 {vr(vKA + c)}, {c << 6}, {vr(vKg)}")
        for d in range(1, 8):
            a(f"v_xor_b32 {vr(vVA + d)}, {d << 5}, {vr(vVA)}")
        a(f"v_add_u32 {vr(vKg)}, {sr(sT0)}, {vr(vKg)}")
        for r in range(4):
            a(f"v_mov_b32 {vr(vZ + r)}, 0")
        a(self.q_addr())
        z = vr(vZ, 4)
        for i in range(10):
            a(f"{M32} {ar(16 * i, 16)}, {z}, {z}, 0")
        a("""
        s_waitcnt vmcnt(12)
        s_barrier
        """)
        for x in range(16):
            a(k_read(x, 0))
        a("s_branch L_pro")
        a.label("L_trans")
        self.stamp()
        self.epilogue_head()
        a(f"""
        s_cmp_eq_u32 {sr(sNext)}, 0
        s_cbranch_scc1 L_final
        """)
        self.epilogue(True)
        a.label("L_pro")
        self.stamp()
        self.prologue()
        self.stamp()
        a(f"""
        s_cmp_eq_u32 {sr(sW)}, 3
        s_cbranch_scc1 L_ent4
        s_cmp_eq_u32 {sr(sPrev)}, 0
        s_cbranch_scc0 L_loop5_1
        """)
        for NU in (5, 4):
            if NU == 4:
                a.label("L_ent4")
                a(f"""
                s_cmp_eq_u32 {sr(sPrev)}, 0
                s_cbranch_scc0 L_loop4_1
                """)
            a(".p2align 6")
            for slot in range(3):
                body, tail = self.loop_third(NU, slot, f"{NU}{slot}")
                a.label(f"L_loop{NU}_{slot}")
                a(body)
            if NU == 4:
                a.label("L_drain")
                for d in range(3):
                    body, tail = self.loop_third(NU, (2 + d) % 3, f"d{d}", d)
                    a(body)
            a.label(f"L_tail{NU}")
            self.stamp()
            qa = self.q_addr()
            qr = self.q_reads()
            for i in range(18):
                a(tail[i])
                if i == 0:
                    a(qa)
                elif i <= 8:
                    a(qr[2 * i - 2: 2 * i])
            if NU == 5:
                a("s_waitcnt vmcnt(0)")
            a(f"""
            s_mov_b32 {sr(sPrev)}, 1
            s_branch L_trans
            """)
        a(self.ool)
        a.label("L_final")
        self.epilogue(False)
        if o.stamps:
            self.stamp()
            a("s_waitcnt vmcnt(0)")
            self.stamp()
            a(f"""
            v_mov_b32 {vr(vST)}, {sr(sXcc)}
            s_lshl_b32 {sr(sT0)}, s2, 2
            s_add_u32 {sr(sT0)}, {sr(sT0)}, 0x90000
            buffer_store_dword {vr(vST)}, off, {sr(sDbg, 4)}, {sr(sT0)}
            """)
        a(f"""
        s_lshl_b32 {sr(sT1)}, {sr(sW)}, 2
        s_add_u32 {sr(sT1)}, {sr(sT1)}, {VREG + TILE}
        v_mov_b32 {vr(x0)}, {sr(sBad)}
        v_mov_b32 {vr(x1)}, {sr(sT1)}
        ds_write_b32 {vr(x1)}, {vr(x0)}
        v_mov_b32 {vr(x1)}, {VREG + TILE}
        s_waitcnt lgkmcnt(0)
        s_barrier
        ds_read_b128 {vr(vK, 4)}, {vr(x1)}
        s_waitcnt lgkmcnt(0)
        v_or_b32 {vr(x0)}, {vr(vK)}, {vr(vK + 1)}
        v_or3_b32 {vr(x0)}, {vr(x0)}, {vr(vK + 2)}, {vr(vK + 3)}
        s_nop 1
        v_readfirstlane_b32 {sr(sBad)}, {vr(x0)}
        s_nop 3
        s_cmp_eq_u32 {sr(sBad)}, 0
        s_cbranch_scc1 L_exit
        s_waitcnt vmcnt(0)
        s_barrier
        s_and_b32 {sr(sT0)}, {sr(sBad)}, 1
        s_xor_b32 {sr(sHl)}, {sr(sT0)}, 1
        s_lshl_b32 {sr(sT0)}, 1, {sr(sHl)}
        s_andn2_b32 {sr(sBad)}, {sr(sBad)}, {sr(sT0)}
        s_mov_b32 {sr(sRedo)}, 1
        s_mov_b32 {sr(sPace)}, 0x10000
        s_branch L_start
        """)
        a.label("L_exit")
        a("s_endpgm")

    def q_addr(self):
        return [f"v_xor_b32 {vr(vS + 44 + c)}, {c << 6}, {vr(vKg)}" for c in range(4)]

    def q_reads(self):
        L = []
        for u in range(4):
            for c in range(4):
                L.append(f"ds_read_b128 {vr(vQ + 16 * u + 4 * c, 4)}, {vr(vS + 44 + c)}" + (f" offset:{1024 * u}" if u else ""))
        return L

    def allreduce5(self, op, base, tmp):
        L = []
        for sw in ("v_permlane16_swap_b32", "v_permlane32_swap_b32"):
            for u in range(5):
                L.append(f"v_mov_b32 {vr(tmp + u)}, {vr(base + u)}")
            for u in range(5):
                L.append(f"{sw} {vr(base + u)}, {vr(tmp + u)}")
            for u in range(5):
                L.append(f"{op} {vr(base + u)}, {vr(base + u)}, {vr(tmp + u)}")
        return L

    def epilogue_head(self):
        a = self.a
        o = self.o
        inv = vNM
        for r in range(4):
            a(f"v_mov_b32 {vr(vZ + r)}, 0")
        a("s_nop 3")
        for u in range(5):
            a(f"v_rcp_f32 {vr(inv + 2 * u)}, {vr(VLS[u])}")
        a(f"v_cmp_ngt_f32 {sr(sT2, 2)}, {sr(sLim)}, {vr(VLS[0])}")
        for u in range(1, 5):
            a(f"v_cmp_ngt_f32 vcc, {sr(sLim)}, {vr(VLS[u])}")
            a(f"s_or_b64 {sr(sT2, 2)}, {sr(sT2, 2)}, vcc")
        a(f"""
        s_cmp_lg_u64 {sr(sT2, 2)}, 0
        s_cselect_b32 {sr(sT0)}, 1, 0
        s_lshl_b32 {sr(sT0)}, {sr(sT0)}, {sr(sPl)}
        s_cmp_eq_u32 {sr(sRedo)}, 0
        s_cselect_b32 {sr(sT0)}, {sr(sT0)}, 0
        s_or_b32 {sr(sBad)}, {sr(sBad)}, {sr(sT0)}
        s_add_u32 {sr(sT1)}, {sr(sW4096)}, 65536
        """)
        if o.abl:
            a(f"s_mov_b32 {sr(sBad)}, 0")

    def set_o(self):
        self.a(f"""
        s_lshl_b32 {sr(sT0)}, s3, 1
        s_add_u32 {sr(sT0)}, {sr(sT0)}, {sr(sPl)}
        s_mul_i32 {sr(sT0)}, {sr(sT0)}, {QBYTES}
        s_add_u32 {sr(sO)}, {sr(sOUT)}, {sr(sT0)}
        s_addc_u32 {sr(sO + 1)}, {sr(sOUT + 1)}, 0
        """)

    def epilogue(self, mid):
        a = self.a
        o = self.o
        tag = "m" if mid else "f"
        inv = vNM
        wa = vNM + 10
        ra = vNM + 14
        cv = vS
        rb = vS + 16
        z = vr(vZ, 4)
        if not mid:
            a(f"""
            s_cmp_eq_u32 {sr(sStaged)}, 0
            s_cbranch_scc1 L_no4
            s_cmp_eq_u32 {sr(sW)}, 3
            s_cbranch_scc1 L_no4
            """)
            for i in range(4):
                off = f" offset:{1024 * i}" if i else ""
                a(f"buffer_store_dwordx4 {ar(aO4 + 4 * i, 4)}, {vr(vLane16)}, {sr(sO, 4)}, {sr(sT1)} offen{off}{self.st}")
            a.label("L_no4")
        self.set_o()
        a(f"s_lshl_b32 {sr(sEo)}, {sr(sW)}, 14")
        if mid:
            a(f"s_add_u32 {sr(sT0)}, {sr(sEo)}, {QREG}")
        else:
            a(f"""
            s_cmp_eq_u32 {sr(sStaged)}, 0
            s_cselect_b32 {sr(sT0)}, {QREG}, 0
            s_add_u32 {sr(sT0)}, {sr(sT0)}, {sr(sEo)}
            s_add_u32 {sr(sEo + 1)}, {sr(sEo)}, 4096
            s_add_u32 {sr(sEo + 2)}, {sr(sEo)}, 8192
            s_add_u32 {sr(sEo + 3)}, {sr(sEo)}, 12288
            """)
        a(f"v_add_u32 {vr(wa)}, {sr(sT0)}, {vr(vEw)}")
        a(f"v_add_u32 {vr(ra)}, {sr(sT0)}, {vr(vEr)}")
        for k in range(1, 4):
            a(f"v_xor_b32 {vr(wa + k)}, {k << 5}, {vr(wa)}")
        a(f"v_xor_b32 {vr(ra + 1)}, 64, {vr(ra)}")

        def store(u, i):
            if u < 4:
                off = f" offset:{1024 * u}" if u else ""
                so = sEo + i
            else:
                off = f" offset:{1024 * i}" if i else ""
                so = sT1
            if o.nost:
                return "s_nop 0"
            return f"buffer_store_dwordx4 {vr(rb + 16 * (u & 1) + 4 * i, 4)}, {vr(vLane16)}, {sr(sO, 4)}, {sr(so)} offen{off}{self.st}"

        def convert(u, eb, extra=None):
            for dt in range(8):
                tb = cv + 4 * (dt & 3)
                acc = aO + 32 * u + 4 * dt
                for r in range(4):
                    a(f"v_accvgpr_read_b32 {vr(tb + r)}, {ar(acc + r)}")
                for r in range(2):
                    a(f"v_pk_mul_f32 {vr(tb + 2 * r, 2)}, {vr(tb + 2 * r, 2)}, {vr(inv + 2 * u, 2)} op_sel_hi:[1,0]")
                for r in range(2):
                    a(f"v_cvt_pk_bf16_f32 {vr(tb + r)}, {vr(tb + 2 * r)}, {vr(tb + 2 * r + 1)}")
                if mid:
                    a(f"{M16} {ar(acc, 4)}, {z}, {z}, 0")
                if extra and dt == 3:
                    a("s_waitcnt lgkmcnt(3)")
                a(f"ds_write_b64 {vr(wa + (dt & 3))}, {vr(tb, 2)} offset:{eb + 128 * (dt >> 2)}")
                if extra and 3 <= dt < 7:
                    a(extra[dt - 3])

        if mid:
            a(f"""
            s_mov_b32 {sr(sStaged)}, 13
            s_cmp_eq_u32 {sr(sW)}, 3
            s_cbranch_scc0 L_m4
            v_add_u32 {vr(vDr)}, {QREG}, {vr(vEr)}
            v_xor_b32 {vr(vDr + 1)}, 64, {vr(vDr)}
            s_branch L_m03
            """)
            a.label("L_m4")
            convert(4, 0)
            for i in range(4):
                a(f"ds_read_b128 {ar(aO4 + 4 * i, 4)}, {vr(ra + (i & 1))} offset:{1024 * i}")
            a.label("L_m03")
            for u in range(4):
                convert(u, 4096 * u)
            return
        for u in range(5):
            if u == 4:
                a(f"""
                s_cmp_eq_u32 {sr(sW)}, 3
                s_cbranch_scc1 L_epi3
                """)
            eb = (u & 3) * 4096
            convert(u, eb, [store(u - 1, i) for i in range(4)] if u else None)
            for i in range(4):
                a(f"ds_read_b128 {vr(rb + 16 * (u & 1) + 4 * i, 4)}, {vr(ra + (i & 1))} offset:{eb + 1024 * i}")
        for i in range(4):
            a(f"s_waitcnt lgkmcnt({3 - i})")
            a(store(4, i))
        a("s_branch L_epidone")
        a.label("L_epi3")
        for i in range(4):
            a(f"s_waitcnt lgkmcnt({3 - i})")
            a(store(3, i))
        a.label("L_epidone")

    def prologue(self):
        a = self.a
        x0, x1 = vX, vX + 1
        a(f"""
        s_cmp_eq_u32 {sr(sPrev)}, 0
        s_cselect_b32 {sr(sPl)}, {sr(sHl)}, 1
        s_or_b32 {sr(sT0)}, {sr(sPl)}, {sr(sRedo)}
        s_xor_b32 {sr(sNext)}, {sr(sT0)}, 1
        s_mul_i32 {sr(sQstop)}, {sr(sNext)}, {16 // self.o.qrate - self.o.qpro}
        s_mul_i32 {sr(sStop)}, {sr(sNext)}, 3
        s_add_u32 {sr(sStop)}, {sr(sStop)}, 13
        s_mov_b32 {sr(sJ)}, 0
        s_cmp_eq_u32 {sr(sPrev)}, 0
        s_cselect_b32 {sr(sRelax)}, {self.o.soft}, {self.o.soft2}
        s_mov_b32 {sr(sQn)}, {self.o.qrate * self.o.qpro}
        s_waitcnt lgkmcnt(0)
        """)
        tq = vS
        mb = vS + 16
        z = vr(vZ, 4)
        zl = [f"{M32} {ar(aV + 16 * i, 16)}, {z}, {z}, 0" for i in range(4)]

        def max3(u, first):
            b = mb + 4 * u
            if first:
                return [f"v_max3_f32 {vr(vM + u)}, {vr(b)}, {vr(b + 1)}, {vr(b + 2)}",
                        f"v_max_f32 {vr(vM + u)}, {vr(vM + u)}, {vr(b + 3)}"]
            return [f"v_max3_f32 {vr(vM + u)}, {vr(vM + u)}, {vr(b)}, {vr(b + 1)}",
                    f"v_max3_f32 {vr(vM + u)}, {vr(vM + u)}, {vr(b + 2)}, {vr(b + 3)}"]

        def fetch(u):
            a(f"""
            s_cmp_eq_u32 {sr(sPrev)}, 0
            s_cbranch_scc0 L_f{u}
            """)
            if u == 0:
                a(self.own_q(3))
            elif u == 1:
                a(self.q4_loads())
            elif u == 2:
                a([f"s_add_u32 m0, {sr(sW4096)}, {VREG}", "s_nop 0"])
                a([self.dma(sB, vDma, sOff, i) for i in range(4)])
                a(self.tile_advance())
            if u < 3:
                a("s_waitcnt vmcnt(12)")
            else:
                a(f"""
                s_cmp_eq_u32 {sr(sW)}, 3
                s_cbranch_scc0 L_g3
                """)
                self.loader_tile(1)
                a("""
                s_waitcnt vmcnt(40)
                s_branch L_h3
                """)
                a.label("L_g3")
                a("s_waitcnt vmcnt(8)")
                a.label("L_h3")
            a(self.q_reads()[4 * u: 4 * u + 4])
            a("s_waitcnt lgkmcnt(0)")
            a.label(f"L_f{u}")

        def scale(u, mfs, extra=()):
            if u < 4:
                fetch(u)
            for it, d in enumerate(range(16 * u, 16 * u + 16, 2)):
                t0 = tq + 4 * ((d >> 1) & 3)
                for k in range(2):
                    a(f"v_lshlrev_b32 {vr(t0 + 2 * k)}, 16, {vr(vQ + d + k)}")
                    a(f"v_and_b32 {vr(t0 + 2 * k + 1)}, {sr(sMask)}, {vr(vQ + d + k)}")
                for k in range(2):
                    a(f"v_pk_mul_f32 {vr(t0 + 2 * k, 2)}, {vr(t0 + 2 * k, 2)}, {sr(sC, 2)}")
                if it < len(mfs):
                    a(mfs[it])
                for k in range(2):
                    a(f"v_cvt_pk_bf16_f32 {vr(vQ + d + k)}, {vr(t0 + 2 * k)}, {vr(t0 + 2 * k + 1)}")
            a(list(extra))

        def mq(u):
            return [qk_mfma(u, mb + 4 * u, c, "0") for c in range(4)]

        scale(0, [f"{M16} {vr(VLS[u], 4)}, {z}, {z}, 0" for u in range(5)])
        scale(1, mq(0), max3(0, True))
        scale(2, mq(1), max3(1, True))
        scale(3, mq(2), max3(2, True))
        a(f"""
        s_cmp_eq_u32 {sr(sW)}, 3
        s_cbranch_scc0 L_q4
        """)
        a(mq(3))
        a("s_branch L_q4done")
        a.label("L_q4")
        a(f"""
        s_cmp_eq_u32 {sr(sPrev)}, 0
        s_cbranch_scc0 L_q4ok
        s_waitcnt vmcnt(4)
        """)
        a.label("L_q4ok")
        for d in range(16):
            a(f"v_accvgpr_read_b32 {vr(vQ + 64 + d)}, {ar(aQ4 + d)}")
        scale(4, mq(3))
        a("s_nop 1")
        a(mq(4))
        a.label("L_q4done")
        a(f"""
        s_add_u32 {sr(sQS)}, {sr(sQS)}, {QBYTES}
        s_addc_u32 {sr(sQS + 1)}, {sr(sQS + 1)}, 0
        """)
        a(zl[0])
        a(f"s_cmp_lg_u32 {sr(sRedo)}, 0")
        a("s_nop 5")
        a(max3(3, True))
        a(max3(4, True))
        a("s_cbranch_scc1 L_redomax")
        a.label("L_maxdone")
        sub = Asm()
        sub.label("L_redomax")
        sub(f"""
        s_mov_b32 {sr(sT3)}, 63
        s_lshl_b32 {sr(sT2)}, {sr(sPl)}, 18
        v_and_b32 {vr(x0)}, 15, v0
        v_lshlrev_b32 {vr(x0)}, 8, {vr(x0)}
        v_lshrrev_b32 {vr(x1)}, 4, v0
        v_lshl_or_b32 {vr(x0)}, {vr(x1)}, 4, {vr(x0)}
        """)
        sub.label("L_max")
        for c in range(4):
            sub(f"buffer_load_dwordx4 {vr(vK + 4 * c, 4)}, {vr(x0)}, {sr(sA, 4)}, {sr(sT2)} offen offset:{64 * c}")
        sub(f"""
        s_add_u32 {sr(sT2)}, {sr(sT2)}, 4096
        s_waitcnt vmcnt(0)
        """)
        for u in range(5):
            sub(mq(u))
        sub("s_nop 7")
        for u in range(5):
            sub(max3(u, False))
        sub(f"""
        s_sub_u32 {sr(sT3)}, {sr(sT3)}, 1
        s_cbranch_scc0 L_max
        """)
        for x in range(4):
            sub(k_read(x, 0))
        sub("s_branch L_maxdone")
        self.ool = sub.lines
        rest = self.allreduce5("v_max_f32", vM, vS)
        k = 1
        for i, ln in enumerate(rest):
            if i % 8 == 0 and k < 4:
                a(zl[k])
                k += 1
            a(ln)
        for r in range(4):
            a(f"v_sub_f32 {vr(vNM + r)}, 0, {vr(vM)}")
        a("s_waitcnt lgkmcnt(0)")
        rest = []
        for u in range(1, 5):
            for r in range(4):
                rest.append(f"v_sub_f32 {vr(vNM + 4 * u + r)}, 0, {vr(vM + u)}")
        for r in (0, 1, 2, 3, 8, 9, 10, 11):
            rest.append(f"v_mov_b32 {vr(vS + 32 + r)}, 0")
        for r in range(4):
            rest.append(f"v_mov_b32 {vr(vZ + r)}, 0x3f803f80")
        a(rest[:1])
        rest = rest[1:]
        for x in range(8):
            a(qk_mfma(0, vS + 4 * (x >> 2), x, vr(vNM, 4)))
            a(rest[4 * x: 4 * x + 4])
        a(f"""
        s_cmp_eq_u32 {sr(sPrev)}, 0
        s_cbranch_scc0 L_prodone
        s_cmp_eq_u32 {sr(sW)}, 3
        s_cbranch_scc1 L_pro3
        s_waitcnt vmcnt(0)
        s_barrier
        s_cmp_eq_u32 {sr(sNext)}, 0
        s_cbranch_scc1 L_prodone
        """)
        a(self.q4_loads())
        a("s_branch L_prodone")
        a.label("L_pro3")
        a("""
        s_waitcnt vmcnt(32)
        s_barrier
        """)
        assert self.o.qpro == 0
        self.loader_tile(2)
        a.label("L_prodone")

    def text(self):
        return (HEADER + f""".amdgcn_target "amdgcn-amd-amdhsa--gfx950"
.text
.globl {NAME}_kernel
.p2align 8
.type {NAME}_kernel,@function
{NAME}_kernel:
""" + self.a.text() + f""".section .rodata,"a"
.p2align 6
.amdhsa_kernel {NAME}_kernel
  .amdhsa_next_free_vgpr 512
  .amdhsa_next_free_sgpr {NSGPR}
  .amdhsa_accum_offset 256
  .amdhsa_group_segment_fixed_size 0
  .amdhsa_kernarg_size 48
  .amdhsa_user_sgpr_count 2
  .amdhsa_user_sgpr_kernarg_segment_ptr 1
  .amdhsa_system_sgpr_workgroup_id_x 1
.end_amdhsa_kernel
""")


_REG = re.compile(r"\b([va])(?:(\d+)|\[(\d+):(\d+)\])")


def regs(op):
    m = _REG.fullmatch(op.strip())
    if not m:
        return set()
    lo = int(m.group(2) or m.group(3))
    hi = int(m.group(2) or m.group(4))
    return {(m.group(1), i) for i in range(lo, hi + 1)}


def check_scc(body):
    last = None
    for ln in body:
        mn = ln.split(" ")[0]
        if mn.startswith(("s_cselect", "s_cbranch_scc")):
            assert last is not None and last.startswith(("s_cmp", "s_bitcmp")), (last, ln)
        if mn.startswith(("s_cmp", "s_bitcmp", "s_add", "s_sub", "s_and", "s_or", "s_xor", "s_lsh", "s_mul_hi")):
            last = mn


def check_hazards(body, cyclic=True):
    ins = [ln for ln in body if not ln.endswith(":")]
    seq = ins + ins if cyclic else ins
    info = []
    for ln in seq:
        mn, _, rest = ln.partition(" ")
        ops = [x.strip().split(" ")[0] for x in rest.split(",")] if rest else []
        info.append((mn, ops, ln))

    def states(i, j):
        n = 0
        for k in range(i + 1, j):
            mn, ops, _ = info[k]
            n += int(ops[0]) + 1 if mn == "s_nop" else 1
        return n

    N = len(seq)
    for i, (mn, ops, ln) in enumerate(info[: len(ins)]):
        if mn.startswith("v_mfma"):
            big = "32x32" in mn
            dAB, dC, dV, dW = (12, 10, 12, 7) if big else (8, 6, 8, 3)
            d = regs(ops[0])
            c = regs(ops[3])
            for j in range(i + 1, min(N, i + 20)):
                mn2, ops2, ln2 = info[j]
                if mn2.startswith("v_mfma"):
                    if (regs(ops2[1]) | regs(ops2[2])) & d and states(i, j) < dAB:
                        raise SystemExit(f"hazard mfma D->AB: {ln} -> {ln2}")
                    c2 = regs(ops2[3])
                    if c2 & d and c2 != d and states(i, j) < dC:
                        raise SystemExit(f"hazard mfma D->C overlap: {ln} -> {ln2}")
                elif mn2.startswith(("v_", "ds_", "buffer_")):
                    touched = set()
                    for o_ in ops2:
                        touched |= regs(o_)
                    if touched & d and states(i, j) < dV:
                        raise SystemExit(f"hazard mfma D->valu ({states(i, j)}): {ln} -> {ln2}")
                    if mn2.startswith("v_") and regs(ops2[0]) & c and states(i, j) < dW:
                        raise SystemExit(f"hazard mfma C war: {ln} -> {ln2}")
        elif mn.startswith("v_"):
            d = regs(ops[0])
            if "permlane" in mn:
                d |= regs(ops[1])
            for j in range(i + 1, min(N, i + 4)):
                mn2, ops2, ln2 = info[j]
                if mn2.startswith("v_mfma"):
                    if (regs(ops2[1]) | regs(ops2[2]) | regs(ops2[3])) & d and states(i, j) < 2:
                        raise SystemExit(f"hazard valu->mfma: {ln} -> {ln2}")
                elif "permlane" in mn2 and (regs(ops2[0]) | regs(ops2[1])) & d and states(i, j) < 2:
                    raise SystemExit(f"hazard valu->permlane: {ln} -> {ln2}")
                elif mn in ("v_exp_f32", "v_rcp_f32") and mn2.startswith("v_") and states(i, j) < 1:
                    src = set()
                    for o_ in ops2[1:]:
                        src |= regs(o_)
                    if src & d:
                        raise SystemExit(f"hazard trans->valu: {ln} -> {ln2}")
        elif mn.startswith("buffer_store_dwordx4"):
            d = regs(ops[0])
            for j in range(i + 1, min(N, i + 3)):
                mn2, ops2, ln2 = info[j]
                if mn2.startswith(("v_", "ds_read")) and regs(ops2[0]) & d and states(i, j) < 2:
                    raise SystemExit(f"hazard store data war: {ln} -> {ln2}")
        elif mn.startswith("s_") and ops and ops[0] == "m0":
            if i + 1 < N and info[i + 1][0].startswith("buffer_"):
                raise SystemExit(f"hazard m0: {ln}")


def ilist(s):
    return [int(x) for x in s.split(",")]


def main():
    p = argparse.ArgumentParser()
    p.add_argument("-o", default=f"cdna_kernels/{NAME}.s")
    p.add_argument("--nt", type=int, default=1)
    p.add_argument("--stmode", type=int, default=4)
    p.add_argument("--vslots", type=ilist, default=[1, 1, 4, 4, 7, 7, 10, 10, 13, 13, 16, 16, 19, 19, 22, 22, 25, 25, 28, 28,
                                                    30, 30, 31, 31, 32, 32, 33, 33, 34, 34, 35, 35])
    p.add_argument("--kslots", type=ilist, default=[120, 120, 124, 124, 128, 128, 132, 132, 136, 136, 140, 140, 144, 144, 148, 148])
    p.add_argument("--fat", type=ilist, default=[])
    p.add_argument("--elag", type=int, default=4)
    p.add_argument("--barslot", type=int, default=52)
    p.add_argument("--barc", type=int, default=112)
    p.add_argument("--dstep", type=int, default=2)
    p.add_argument("--lat", type=int, default=7)
    p.add_argument("--soft", type=int, default=0)
    p.add_argument("--soft2", type=int, default=0)
    p.add_argument("--softd", type=int, default=2)
    p.add_argument("--swin", type=int, default=-1)
    p.add_argument("--xcc", type=int, default=1)
    p.add_argument("--vodd", type=int, default=32)
    p.add_argument("--strict", type=int, default=6)
    p.add_argument("--pace", type=int, default=0)
    p.add_argument("--tries", type=int, default=12)
    p.add_argument("--qpro", type=int, default=0)
    p.add_argument("--qrate", type=int, default=4)
    p.add_argument("--slow", type=int, default=0)
    p.add_argument("--stag", type=int, default=0)
    p.add_argument("--stagm", type=int, default=3)
    p.add_argument("--pref", type=int, default=1)
    p.add_argument("--nost", type=int, default=0)
    p.add_argument("--remap", type=int, default=1)
    p.add_argument("--rotsh", type=int, default=0)
    p.add_argument("--rotmul", type=int, default=0)
    p.add_argument("--abl", default="")
    p.add_argument("--stamps", type=int, default=0)
    o = p.parse_args()
    g = Gen(o)
    g.gen()
    if not o.abl:
        check_hazards(g.a.lines, cyclic=False)
    open(o.o, "w").write(g.text())


if __name__ == "__main__":
    main()
```
